```python
import torch

def _softmax(x, axis=-1):
    return torch.softmax(x, dim=axis)
def _gelu(x):
    return torch.nn.functional.gelu(x, approximate="tanh")
def _silu(x):
    return torch.nn.functional.silu(x)
def _sigmoid(x):
    return torch.sigmoid(x)
def _layernorm(x, axis=-1, eps=1e-5):
    m = x.mean(dim=axis, keepdim=True)
    v = x.var(dim=axis, keepdim=True, unbiased=False)
    return (x - m) / torch.sqrt(v + eps)
def _scatter_add(tgt, idx, src, axis=0):
    return tgt.clone().index_add_(axis, idx, src)
def _segment_sum(src, seg, n):
    out = torch.zeros((n,) + src.shape[1:], dtype=src.dtype)
    return out.index_add_(0, seg, src)
def _pad(x, pw):
    flat = tuple(v for pair in reversed(pw) for v in pair)
    return torch.nn.functional.pad(x, flat)

kernel_name = 'recurrent_scan__linear_attn_block__mixer_token_mlp__prompt'

def setup_inputs():

    _w = (lambda a: (lambda t: t.to(torch.bfloat16) if t.is_floating_point() else t)(torch.as_tensor(a)))
    def _A_setup():
        B, S, D = 1, 2048, 512
        return {
            "x": _w((lambda *s: torch.randn(*s, dtype=torch.bfloat16) * 0.05)(B, S, D)),
            "wqkv": _w((lambda *s: torch.randn(*s, dtype=torch.bfloat16) * 0.2)(D, 3 * D)),
            "wo": _w((lambda *s: torch.randn(*s, dtype=torch.bfloat16) * 0.2)(D, D)),
        }
    _A_in = _A_setup()

    def _B_setup():
        B, S, D, F = 1, 2048, 512, 1792
        return {
            "x": _w((lambda *s: torch.randn(*s, dtype=torch.bfloat16) * 0.05)(B, S, D)),
            "w1": _w((lambda *s: torch.randn(*s, dtype=torch.bfloat16) * 0.4)(S, F) * (S ** -0.5)),
            "b1": _w((lambda *s: torch.randn(*s, dtype=torch.bfloat16) * 3.2)(F) * 0.02),
            "w2": _w((lambda *s: torch.randn(*s, dtype=torch.bfloat16) * 0.1)(F, S) * (F ** -0.5)),
            "b2": _w((lambda *s: torch.randn(*s, dtype=torch.bfloat16) * 0.2)(S) * 0.02),
        }
    _B_in = _B_setup()

    return {
        "A_x": _A_in["x"],
        "A_wqkv": _A_in["wqkv"],
        "A_wo": _A_in["wo"],
        "B_x": _B_in["x"],
        "B_w1": _B_in["w1"],
        "B_b1": _B_in["b1"],
        "B_w2": _B_in["w2"],
        "B_b2": _B_in["b2"],
    }

def reference(A_x, A_wqkv, A_wo, B_x, B_w1, B_b1, B_w2, B_b2):
    def _A_ref(x, wqkv, wo):
        B, S, D = x.shape
        H = 32; Dh = D // H
        qkv = (lambda x, *d: x.permute(*d))((x @ wqkv).reshape(B, S, 3, H, Dh), 2, 0, 3, 1, 4)
        q, k, v = qkv[0], qkv[1], qkv[2]
        phi = lambda t: torch.where(t > 0, t + 1, torch.exp(t)) + 1e-6
        pq, pk = phi(q), phi(k)
        kv = torch.einsum("bhsd,bhse->bhde", pk, v)
        z = torch.einsum("bhsd->bhd", pk)
        num = torch.einsum("bhqd,bhde->bhqe", pq, kv)
        den = torch.einsum("bhqd,bhd->bhq", pq, z)[..., None] + 1e-6
        o = num / den
        return (lambda x, *d: x.permute(*d))(o, 0, 2, 1, 3).reshape(B, S, D) @ wo

    def _B_ref(x, w1, b1, w2, b2):
        B, S, D = x.shape
        h = _layernorm(x, axis=-1)
        u = torch.einsum("bsd,sf->bdf", h, w1) + b1
        u = _gelu(u)
        y = torch.einsum("bdf,fs->bds", u, w2) + b2
        return (lambda x, *d: x.permute(*d))(y, 0, 2, 1)

    x = A_x
    xn = _layernorm(x, axis=-1)
    s = _A_ref(xn, A_wqkv, A_wo)
    g = _silu(_B_ref(xn, B_w1, B_b1, B_w2, B_b2))
    return x + s * g
```

```python
import re

TRANS = ("v_exp_f32", "v_log_f32", "v_rcp_f32", "v_rsq_f32", "v_sqrt_f32", "v_sin_f32", "v_cos_f32")
REG_RE = re.compile(r"^(-?)\|?(?:abs\()?([vsa])(?:(\d+)|\[(\d+):(\d+)\])\)?\|?$")


def regs_of(tok):
    tok = tok.strip()
    if tok in ("vcc", "vcc_lo", "vcc_hi"):
        return {("s", "vcc")}
    if tok in ("exec", "exec_lo", "exec_hi"):
        return {("s", "exec")}
    if tok == "m0":
        return {("s", "m0")}
    m = REG_RE.match(tok)
    if not m:
        return set()
    f = m.group(2)
    if m.group(3) is not None:
        lo = hi = int(m.group(3))
    else:
        lo, hi = int(m.group(4)), int(m.group(5))
    return {(f, i) for i in range(lo, hi + 1)}


class Ins:
    __slots__ = ("text", "op", "kind", "wr", "rd", "srcc", "srcab", "passes", "dpp", "states", "wide", "lds_dma", "lanesel")

    def __init__(self, text):
        self.text = text
        body = text.split(";")[0].strip()
        parts = body.split(None, 1)
        self.op = parts[0] if parts else ""
        rest = parts[1] if len(parts) > 1 else ""
        toks = [(t.split() or [""])[0] for t in rest.split(",")] if rest else []
        mods = rest
        op = self.op
        self.wr, self.rd = set(), set()
        self.srcc, self.srcab, self.lanesel = set(), set(), set()
        self.passes = 0
        self.dpp = "_dpp" in op or "row_" in rest or "quad_perm" in rest
        self.states = 1
        self.wide = False
        self.lds_dma = False
        R = [regs_of(t) for t in toks]
        if op.endswith(":") or op.startswith(".") or not op:
            self.kind = "meta"
            self.states = 0
        elif op == "s_nop":
            self.kind = "salu"
            self.states = int(toks[0], 0) + 1
        elif op.startswith("v_mfma"):
            self.kind = "mfma"
            self.passes = 8 if "32x32" in op else 4
            self.wr = R[0]
            self.srcab = R[1] | R[2]
            self.srcc = R[3]
            self.rd = self.srcab | self.srcc
        elif op.startswith("v_"):
            self.kind = "valu"
            self.wr = set(R[0])
            srcs = R[1:]
            if "_co_" in op:
                self.wr |= R[1]
                srcs = R[2:]
            for r in srcs:
                self.rd |= r
            if op.startswith(("v_fmac", "v_dot2c", "v_writelane")) or "_dpp" in op:
                self.rd |= R[0]
            if "permlane" in op:
                self.wr |= R[1]
                self.rd |= R[0]
            if op.startswith(("v_readlane", "v_writelane")) and len(R) > 2:
                self.lanesel = R[2]
            if op.startswith("v_cmpx"):
                self.wr.add(("s", "exec"))
        elif op.startswith("ds_"):
            self.kind = "ds"
            if op.startswith(("ds_read", "ds_bpermute", "ds_permute", "ds_swizzle")):
                self.wr = R[0]
                for r in R[1:]:
                    self.rd |= r
            else:
                for r in R:
                    self.rd |= r
        elif op.startswith(("buffer_", "global_")):
            self.kind = "vmem"
            is_lds = re.search(r"\blds\b", mods) is not None or "load_lds" in op
            self.lds_dma = is_lds
            if "load" in op and not is_lds:
                self.wr = R[0]
                for r in R[1:]:
                    self.rd |= r
            elif "atomic" in op and "sc0" in mods:
                self.wr = R[0]
                for r in R:
                    self.rd |= r
            else:
                for r in R:
                    self.rd |= r
            if is_lds:
                self.rd.add(("s", "m0"))
            if "store" in op and ("x4" in op or "x3" in op):
                self.wide = True
        elif op.startswith("s_"):
            self.kind = "salu"
            if op.startswith(("s_cmp", "s_cbranch", "s_branch", "s_waitcnt", "s_barrier", "s_endpgm", "s_sleep", "s_setprio", "s_bitcmp")):
                for r in R:
                    self.rd |= r
            else:
                if R:
                    self.wr = set(R[0])
                for r in R[1:]:
                    self.rd |= r
                if "saveexec" in op:
                    self.wr.add(("s", "exec"))
        else:
            raise ValueError("unknown instruction: " + text)


def _need(p, c):
    n = 0
    vw = {r for r in p.wr if r[0] in "va"}
    sw = {r for r in p.wr if r[0] == "s"}
    if p.kind == "valu":
        if c.kind == "mfma" and vw & c.rd:
            n = max(n, 2)
        if c.kind == "valu":
            if c.dpp and vw & c.rd:
                n = max(n, 2)
            if "permlane" in c.op and vw & c.rd:
                n = max(n, 2)
            if c.op.startswith(("v_readlane", "v_readfirstlane")) and vw & c.rd:
                n = max(n, 1)
            if p.op.startswith(TRANS) and vw & c.rd:
                n = max(n, 1)
            if "sdwa" in p.op and vw & (c.rd | c.wr):
                n = max(n, 1)
            if sw & c.rd:
                n = max(n, 2)
            if sw & c.lanesel:
                n = max(n, 4)
            if ("s", "exec") in sw:
                n = max(n, 5)
        if c.kind == "vmem" and sw & c.rd:
            n = max(n, 5)
        if c.kind == "mfma" and ("s", "exec") in sw:
            n = max(n, 4)
        if c.kind == "salu" and sw & c.rd:
            n = max(n, 1)
    if p.kind == "mfma":
        big = {4: 8, 8: 12}[p.passes]
        if c.kind == "mfma":
            if p.wr & c.srcab:
                n = max(n, big)
            if p.wr & c.srcc and not (p.wr == c.srcc and p.passes == c.passes):
                n = max(n, {4: 6, 8: 10}[p.passes])
            if p.wr & c.wr and not (p.wr & c.srcc):
                n = max(n, big)
        elif c.kind in ("valu", "vmem", "ds"):
            if p.wr & (c.rd | c.wr):
                n = max(n, big)
            if c.kind == "valu" and p.srcc & c.wr:
                n = max(n, {4: 3, 8: 7}[p.passes])
    if p.kind == "salu" and ("s", "m0") in p.wr and c.kind == "vmem" and c.lds_dma:
        n = max(n, 1)
    if p.kind == "vmem" and p.wide and c.kind == "valu":
        if {r for r in p.rd if r[0] in "va"} & c.wr:
            n = max(n, 2)
    if p.kind in ("vmem", "ds") and c.kind == "valu" and c.dpp and vw & c.rd:
        n = max(n, 2)
    return n


def pad_hazards(lines):
    out = []
    hist = []
    for text in lines:
        ins = Ins(text)
        if ins.kind == "meta":
            out.append(text)
            continue
        need = 0
        dist = 0
        for p in reversed(hist):
            k = _need(p, ins) - dist
            if k > need:
                need = k
            dist += p.states
            if dist >= 20:
                break
        while need > 0:
            k = min(need, 16)
            nop = "s_nop %d" % (k - 1)
            out.append("    " + nop)
            hist.append(Ins(nop))
            need -= k
        out.append(text)
        hist.append(ins)
        if len(hist) > 40:
            del hist[:20]
    return out


class Asm:
    def __init__(self):
        self.lines = []
        self.vm = 0
        self.vm_done = 0
        self.lg = 0
        self.lg_done = 0

    def __call__(self, s):
        for ln in s.strip("\n").split("\n"):
            ln = ln.strip()
            if ln:
                self.lines.append(ln if ln.endswith(":") or ln.startswith(".") else "    " + ln)

    def label(self, name):
        self.lines.append(name + ":")

    def comment(self, s):
        self.lines.append("    ; " + s)

    def vmem(self, s):
        self(s)
        self.vm += 1
        return self.vm

    def lds(self, s):
        self(s)
        self.lg += 1
        return self.lg

    def wait(self, vm=None, lg=None):
        parts = []
        if vm is not None and vm > self.vm_done:
            n = min(self.vm - vm, 63)
            parts.append("vmcnt(%d)" % n)
            self.vm_done = self.vm - n
        if lg is not None and lg > self.lg_done:
            n = min(self.lg - lg, 15)
            parts.append("lgkmcnt(%d)" % n)
            self.lg_done = self.lg - n
        if parts:
            self("s_waitcnt " + " ".join(parts))

    def wait_all(self):
        self("s_waitcnt vmcnt(0) lgkmcnt(0)")
        self.vm_done = self.vm
        self.lg_done = self.lg

    def state(self):
        return (self.vm, self.vm_done, self.lg, self.lg_done)

    def restore(self, st):
        self.vm, self.vm_done, self.lg, self.lg_done = st

    def text(self):
        return "\n".join(pad_hazards(self.lines)) + "\n"


def v(i, n=1):
    return "v%d" % i if n == 1 else "v[%d:%d]" % (i, i + n - 1)


def s(i, n=1):
    return "s%d" % i if n == 1 else "s[%d:%d]" % (i, i + n - 1)
```

```python
import struct
import sys
from asmlib import Asm, v, s

NAME = "recurrent_scan__linear_attn_block__mixer_token_mlp__prompt"
S, D, F = 2048, 512, 1792

HF, UF, PQ, OF, KVP, ZP = 0x000000, 0x200000, 0x400000, 0x600000, 0x800000, 0x900000
WS_BYTES = 0xA00000

X, WQKV, WO, W1, W2, WS, OUT, B1, B2 = 8, 12, 16, 20, 24, 28, 32, 36, 40
SW = 3
LDS_BYTES = 160 * 1024
MISC = 128 * 1024
LOG2E = 1.4426950408889634
SC = " sc1"


def fbits(x):
    return "0x%08x" % struct.unpack("<I", struct.pack("<f", x))[0]


def order_seq(n, r, m=4, lead=2):
    keys = sorted(range(n), key=lambda c: (c - lead - 0.5) if c % m == r else c)
    return keys


def pack_nibbles(seq):
    w = 0
    for t, c in enumerate(seq):
        w |= c << (4 * t)
    return w & 0xFFFFFFFF, w >> 32


def set_order(a, dst, n, sres, lead):
    for r in range(4):
        lo, hi = pack_nibbles(order_seq(n, r, 4, lead))
        if r == 0:
            a("s_mov_b32 %s, 0x%x" % (s(dst), lo))
            a("s_mov_b32 %s, 0x%x" % (s(dst + 1), hi))
        else:
            a("s_cmp_eq_u32 %s, %d" % (s(sres), r))
            a("s_cselect_b32 %s, 0x%x, %s" % (s(dst), lo, s(dst)))
            a("s_cselect_b32 %s, 0x%x, %s" % (s(dst + 1), hi, s(dst + 1)))


def get_chunk(a, dst, order, t):
    a("s_bfe_u32 %s, %s, 0x%x" % (s(dst), s(order + (t >> 3)), (4 << 16) | (4 * (t & 7))))


def prologue(a, tag):
    a("s_cmp_ge_u32 s2, 256")
    a("s_cbranch_scc1 L_end_%s" % tag)
    a("s_load_dwordx16 s[48:63], s[0:1], 0")
    a("s_load_dwordx4 s[64:67], s[0:1], 64")
    a("s_load_dwordx2 s[68:69], s[0:1], 80")
    a("v_lshrrev_b32 v1, 6, v0")
    a("v_and_b32 v0, 63, v0")
    a("v_readfirstlane_b32 %s, v1" % s(SW))
    a("s_waitcnt lgkmcnt(0)")
    for srd, src, size in ((X, 48, S * D * 2), (WQKV, 50, D * 3 * D * 2), (WO, 52, D * D * 2), (W1, 56, S * F * 2),
                           (B1, 58, F * 2), (W2, 60, F * S * 2), (B2, 62, S * 2), (OUT, 64, S * D * 2), (WS, 68, WS_BYTES)):
        a("s_mov_b32 %s, %s" % (s(srd), s(src)))
        a("s_mov_b32 %s, %s" % (s(srd + 1), s(src + 1)))
        a("s_mov_b32 %s, 0x%x" % (s(srd + 2), size))
        a("s_mov_b32 %s, 0x20000" % s(srd + 3))


def wave_sum(a, regs, sdst):
    for mod in ("row_shr:1", "row_shr:2", "row_shr:4", "row_shr:8"):
        for r in regs:
            a("v_add_f32_dpp %s, %s, %s %s row_mask:0xf bank_mask:0xf bound_ctrl:1" % (v(r), v(r), v(r), mod))
    for r in regs:
        a("v_add_f32_dpp %s, %s, %s row_bcast:15 row_mask:0xa bank_mask:0xf" % (v(r), v(r), v(r)))
    for r in regs:
        a("v_add_f32_dpp %s, %s, %s row_bcast:31 row_mask:0xc bank_mask:0xf" % (v(r), v(r), v(r)))
    for k, r in enumerate(regs):
        a("v_readlane_b32 %s, %s, 63" % (s(sdst + k), v(r)))


def phase_a(a):
    SI, SJ = 44, 45
    ORD = 70
    SC_, SOW, SOX, SBW, SBX, SM0W, SM0X = 72, 73, 74, 75, 76, 77, 78
    a("s_and_b32 s4, s2, 7")
    a("s_lshr_b32 s5, s2, 3")
    a("s_and_b32 s6, s4, 3")
    a("s_lshl_b32 s6, s6, 3")
    a("s_and_b32 s7, s5, 7")
    a("s_add_u32 %s, s6, s7" % s(SI))
    a("s_lshr_b32 s6, s4, 2")
    a("s_lshl_b32 s6, s6, 2")
    a("s_lshr_b32 s7, s5, 3")
    a("s_add_u32 %s, s6, s7" % s(SJ))
    a("s_lshl_b32 s4, %s, 6" % s(SI))
    a("s_lshl_b32 s5, %s, 3" % s(SJ))
    a("s_add_u32 s4, s4, s5")
    a("s_lshl_b32 s5, %s, 1" % s(SW))
    a("s_add_u32 s4, s4, s5")
    a("s_lshl_b32 s4, s4, 10")
    VL16 = 1
    a("v_lshlrev_b32 %s, 4, v0" % v(VL16))
    LNX = 200
    ln0 = a.vmem("buffer_load_dwordx4 %s, %s, %s, s4 offen" % (v(LNX, 4), v(VL16), s(X, 4)))
    ln1 = a.vmem("buffer_load_dwordx4 %s, %s, %s, s4 offen offset:1024" % (v(LNX + 4, 4), v(VL16), s(X, 4)))
    a("s_sub_u32 s4, %s, %s" % (s(SI), s(SJ)))
    a("s_and_b32 s4, s4, 3")
    set_order(a, ORD, 8, 4, 2)
    VW, VX = 2, 4
    a("v_lshrrev_b32 v10, 3, v0")
    a("v_and_b32 v11, 7, v0")
    a("s_lshl_b32 s4, %s, 4" % s(SW))
    a("v_add_u32 v12, s4, v10")
    a("v_lshrrev_b32 v13, 1, v10")
    for j2 in range(2):
        a("v_and_b32 v14, 1, v13")
        a("v_lshlrev_b32 v14, 1, v14")
        if j2:
            a("v_or_b32 v14, 4, v14")
        a("v_xor_b32 v14, v14, v11")
        a("v_lshlrev_b32 v14, 4, v14")
        a("v_add_u32 v15, %d, v12" % (8 * j2))
        a("v_mul_u32_u24 v16, 3072, v15")
        a("v_add_u32 v16, v16, v14")
        a("v_subrev_u32 %s, %d, v16" % (v(VW + j2), 1024 * j2))
        a("v_add_u32 v14, %d, v13" % (4 * j2))
        a("v_xor_b32 v14, v14, v11")
        a("v_lshlrev_b32 v14, 4, v14")
        a("v_lshlrev_b32 v16, 10, v15")
        a("v_add_u32 v16, v16, v14")
        a("v_subrev_u32 %s, %d, v16" % (v(VX + j2), 1024 * j2))
    a("s_lshl_b32 %s, %s, 7" % (s(SBW), s(SJ)))
    a("s_lshl_b32 %s, %s, 16" % (s(SBX), s(SI)))
    a("s_lshl_b32 %s, %s, 11" % (s(SM0W), s(SW)))
    a("s_add_u32 %s, %s, %d" % (s(SM0X), s(SM0W), 96 * 1024))

    def dma_ops(u):
        slot = u & 3
        ops = []

        def w_op(g, j2):
            def f():
                if g == 0 and j2 == 0:
                    get_chunk(a, SC_, ORD, u)
                    a("s_mul_i32 %s, %s, %d" % (s(SOW), s(SC_), 64 * 3072))
                    a("s_add_u32 %s, %s, %s" % (s(SOW), s(SOW), s(SBW)))
                    a("s_lshl_b32 %s, %s, 7" % (s(SOX), s(SC_)))
                    a("s_add_u32 %s, %s, %s" % (s(SOX), s(SOX), s(SBX)))
                if j2 == 0:
                    if g:
                        a("s_add_u32 %s, %s, 1024" % (s(SOW), s(SOW)))
                    a("s_add_u32 m0, %s, %d" % (s(SM0W), slot * 24576 + g * 8192))
                return a.vmem("buffer_load_dwordx4 %s, %s, %s offen%s lds" % (
                    v(VW + j2), s(WQKV, 4), s(SOW), " offset:1024" if j2 else ""))
            return f

        def x_op(j2):
            def f():
                if j2 == 0:
                    a("s_add_u32 m0, %s, %d" % (s(SM0X), slot * 8192))
                return a.vmem("buffer_load_dwordx4 %s, %s, %s offen%s lds" % (
                    v(VX + j2), s(X, 4), s(SOX), " offset:1024" if j2 else ""))
            return f
        for g in range(3):
            for j2 in range(2):
                ops.append(w_op(g, j2))
        ops += [x_op(0), x_op(1)]
        return ops

    last = {}
    for u in range(3):
        for f in dma_ops(u):
            last[u] = f()

    VA, VS_, VB = 6, 8, 10
    a("v_and_b32 v12, 15, v0")
    a("v_lshrrev_b32 v13, 4, v0")
    a("v_lshrrev_b32 v14, 1, v12")
    a("v_xor_b32 v14, v14, v13")
    a("v_lshlrev_b32 v14, 4, v14")
    a("v_lshl_add_u32 v14, v12, 7, v14")
    a("v_add_u32 %s, %d, v14" % (v(VA), 96 * 1024))
    a("v_xor_b32 %s, 64, %s" % (v(VA + 1), v(VA)))
    a("v_add_u32 %s, %s, %s" % (v(VS_), s(SM0W), v(VA)))
    a("v_add_u32 %s, %s, %s" % (v(VS_ + 1), s(SM0W), v(VA + 1)))
    a("v_lshrrev_b32 v14, 2, v12")
    a("v_and_b32 v15, 3, v12")
    a("v_lshrrev_b32 v16, 1, v14")
    a("v_and_b32 v17, 1, v13")
    a("v_lshl_add_u32 v16, v17, 1, v16")
    a("v_xor_b32 v16, %s, v16" % s(SW))
    a("v_lshlrev_b32 v16, 5, v16")
    a("v_lshl_add_u32 v16, v15, 3, v16")
    a("v_lshl_add_u32 v17, v13, 3, v14")
    a("v_lshl_add_u32 %s, v17, 7, v16" % v(VB))
    a("v_add_u32 %s, 49152, %s" % (v(VB + 1), v(VB)))

    T = 208
    a.wait(vm=ln1)
    for r in range(2):
        for q in range(4):
            a("v_lshlrev_b32 %s, 16, %s" % (v(T + 8 * r + 2 * q), v(LNX + 4 * r + q)))
            a("v_and_b32 %s, 0xffff0000, %s" % (v(T + 8 * r + 2 * q + 1), v(LNX + 4 * r + q)))
    R = 224
    for r in range(2):
        a("v_add_f32 %s, %s, %s" % (v(R + r), v(T + 8 * r), v(T + 8 * r + 1)))
        for e in range(2, 8):
            a("v_add_f32 %s, %s, %s" % (v(R + r), v(R + r), v(T + 8 * r + e)))
    wave_sum(a, [R, R + 1], 4)
    a("v_mov_b32 %s, %s" % (v(R + 2), fbits(-1.0 / D)))
    for r in range(2):
        for e in range(8):
            a("v_fma_f32 %s, %s, %s, %s" % (v(T + 8 * r + e), s(4 + r), v(R + 2), v(T + 8 * r + e)))
    for r in range(2):
        a("v_mul_f32 %s, %s, %s" % (v(R + r), v(T + 8 * r), v(T + 8 * r)))
        for e in range(1, 8):
            a("v_fmac_f32 %s, %s, %s" % (v(R + r), v(T + 8 * r + e), v(T + 8 * r + e)))
    wave_sum(a, [R, R + 1], 4)
    a("v_mov_b32 %s, %s" % (v(R + 2), fbits(1.0 / D)))
    a("v_mov_b32 %s, %s" % (v(R + 3), fbits(1e-5)))
    for r in range(2):
        a("v_mul_f32 %s, %s, %s" % (v(R + 4 + r), s(4 + r), v(R + 2)))
        a("v_add_f32 %s, %s, %s" % (v(R + 6 + r), v(R + 4 + r), v(R + 3)))
        a("v_rsq_f32 %s, %s" % (v(R + 6 + r), v(R + 6 + r)))
    for r in range(2):
        a("v_mul_f32 %s, %s, %s" % (v(R + 4 + r), v(R + 4 + r), v(R + 6 + r)))
        a("v_fma_f32 %s, %s, %s, %s" % (v(R + 4 + r), v(R + 4 + r), v(R + 6 + r), v(R + 3)))
        a("v_rsq_f32 %s, %s" % (v(R + 4 + r), v(R + 4 + r)))
    for r in range(2):
        a("v_mul_f32 %s, %s, %s" % (v(R + 4 + r), v(R + 4 + r), v(R + 6 + r)))
    for r in range(2):
        for e in range(8):
            a("v_mul_f32 %s, %s, %s" % (v(T + 8 * r + e), v(T + 8 * r + e), v(R + 4 + r)))
        for q in range(4):
            a("v_cvt_pk_bf16_f32 %s, %s, %s" % (v(LNX + 4 * r + q), v(T + 8 * r + 2 * q), v(T + 8 * r + 2 * q + 1)))
    a("s_add_u32 s4, %s, %d" % (s(SM0W), MISC))
    a("v_add_u32 v18, s4, %s" % v(VL16))
    a.lds("ds_write_b128 v18, %s" % v(LNX, 4))
    w = a.lds("ds_write_b128 v18, %s offset:1024" % v(LNX + 4, 4))
    a("v_lshlrev_b32 v18, 10, v14")
    a("v_lshl_add_u32 v18, v13, 5, v18")
    a("v_lshl_add_u32 v18, v15, 3, v18")
    a("s_lshl_b32 s4, %s, 8" % s(SW))
    a("s_add_u32 s4, s4, %d" % MISC)
    a("v_add_u32 v18, s4, v18")
    a.wait(lg=w)
    a("s_barrier")
    for it in range(2):
        a.lds("ds_read_b64_tr_b16 %s, v18 offset:%d" % (v(LNX + 4 * it, 2), 128 * it))
        w = a.lds("ds_read_b64_tr_b16 %s, v18 offset:%d" % (v(LNX + 4 * it + 2, 2), 128 * it + 4096))
    a("v_lshrrev_b32 v19, 5, v0")
    a("v_lshlrev_b32 v19, 17, v19")
    a("v_and_b32 v20, 31, v0")
    a("v_lshl_add_u32 v19, v20, 4, v19")
    a("s_lshl_b32 s4, %s, 3" % s(SI))
    a("s_add_u32 s4, s4, %s" % s(SJ))
    a("s_lshl_b32 s4, s4, 9")
    a("s_lshl_b32 s5, %s, 19" % s(SW))
    a("s_add_u32 s4, s4, s5")
    a("s_add_u32 s4, s4, %d" % HF)
    a("s_add_u32 s5, s4, %d" % (2 << 17))
    a.wait(lg=w)
    a.vmem("buffer_store_dwordx4 %s, v19, %s, s4 offen%s" % (v(LNX, 4), s(WS, 4), SC))
    a.vmem("buffer_store_dwordx4 %s, v19, %s, s5 offen%s" % (v(LNX + 4, 4), s(WS, 4), SC))

    ONES = 20
    for q in range(4):
        a("v_mov_b32 %s, 0x3f803f80" % v(ONES + q))
    AQ, AK, AV, CQ, CK, CV, GG, SX = 24, 40, 56, 72, 76, 80, 84, 88
    FR = 96
    MF = "v_mfma_f32_16x16x32_bf16"
    for u in range(8):
        slot = u & 3
        a.wait(vm=last[u])
        a("s_barrier")
        pend = dma_ops(u + 3) if u + 3 < 8 else []
        done = {}
        for kk in range(2):
            fr = FR + 32 * kk
            vb = VB + (slot >> 1)
            ob = (slot & 1) * 24576 + kk * 4096
            for g in range(3):
                a.lds("ds_read_b64_tr_b16 %s, %s offset:%d" % (v(fr + 20 + 4 * g, 2), v(vb), ob + g * 8192))
                done[kk, "b", g] = a.lds("ds_read_b64_tr_b16 %s, %s offset:%d" % (v(fr + 22 + 4 * g, 2), v(vb), ob + g * 8192 + 512))
            for rb in range(4):
                done[kk, "x", rb] = a.lds("ds_read_b128 %s, %s offset:%d" % (v(fr + 4 * rb, 4), v(VA + kk), slot * 8192 + rb * 2048))
            done[kk, "s"] = a.lds("ds_read_b128 %s, %s offset:%d" % (v(fr + 16, 4), v(VS_ + kk), slot * 8192))
            first = (u == 0 and kk == 0)

            def c(r):
                return "0" if first else v(r, 4)
            bq, bk, bv, xs = v(fr + 20, 4), v(fr + 24, 4), v(fr + 28, 4), v(fr + 16, 4)
            seq = []
            seq.append((done[kk, "b", 0], "%s %s, %s, %s, %s" % (MF, v(CQ, 4), bq, v(ONES, 4), c(CQ))))
            seq.append((done[kk, "b", 1], "%s %s, %s, %s, %s" % (MF, v(CK, 4), v(ONES, 4), bk, c(CK))))
            seq.append((done[kk, "b", 2], "%s %s, %s, %s, %s" % (MF, v(CV, 4), v(ONES, 4), bv, c(CV))))
            for rb in range(4):
                x = v(fr + 4 * rb, 4)
                seq.append((done[kk, "x", rb], "%s %s, %s, %s, %s" % (MF, v(AQ + 4 * rb, 4), bq, x, c(AQ + 4 * rb))))
                seq.append((done[kk, "x", rb], "%s %s, %s, %s, %s" % (MF, v(AK + 4 * rb, 4), x, bk, c(AK + 4 * rb))))
                seq.append((done[kk, "x", rb], "%s %s, %s, %s, %s" % (MF, v(AV + 4 * rb, 4), x, bv, c(AV + 4 * rb))))
            seq.append((done[kk, "s"], "%s %s, %s, %s, %s" % (MF, v(GG, 4), xs, xs, c(GG))))
            seq.append((done[kk, "s"], "%s %s, %s, %s, %s" % (MF, v(SX, 4), xs, v(ONES, 4), c(SX))))
            for n, (dep, txt) in enumerate(seq):
                a.wait(lg=dep)
                a(txt)
                if pend and n % 4 == 3:
                    last[u + 3] = pend.pop(0)()
        while pend:
            last[u + 3] = pend.pop(0)()

    a("s_mov_b32 s4, 0xaaaaaaaa")
    a("s_mov_b32 s5, 0xaaaaaaaa")
    a("s_mov_b32 s6, 0xcccccccc")
    a("s_mov_b32 s7, 0xcccccccc")
    T = 96
    for k, src in enumerate((GG, SX)):
        a("v_cndmask_b32 %s, %s, %s, s[4:5]" % (v(T + 2), v(src), v(src + 1)))
        a("v_cndmask_b32 %s, %s, %s, s[4:5]" % (v(T + 3), v(src + 2), v(src + 3)))
        a("v_cndmask_b32 %s, %s, %s, s[6:7]" % (v(T + k), v(T + 2), v(T + 3)))
    a("v_mul_f32 %s, %s, %s" % (v(T + 1), fbits(-1.0 / D), v(T + 1)))
    a("v_mul_f32 %s, %s, %s" % (v(T), fbits(1.0 / D), v(T)))
    a("v_fma_f32 %s, -%s, %s, %s" % (v(T), v(T + 1), v(T + 1), v(T)))
    a("v_max_f32 %s, 0, %s" % (v(T), v(T)))
    a("v_add_f32 %s, %s, %s" % (v(T), fbits(1e-5), v(T)))
    a("v_rsq_f32 %s, %s" % (v(T), v(T)))
    STAT = MISC + 8192
    a("v_and_b32 v12, 15, v0")
    a("v_lshlrev_b32 v12, 2, v12")
    a("v_add_u32 v12, %d, v12" % STAT)
    a("s_lshl_b32 s4, %s, 6" % s(SW))
    a("v_add_u32 v13, s4, v12")
    a("v_lshrrev_b32 v14, 4, v0")
    a("v_lshlrev_b32 v14, 4, v14")
    a("v_add_u32 v15, %d, v14" % STAT)
    a("s_mov_b32 exec_lo, 0x00f0000f")
    a("s_mov_b32 exec_hi, 0xf0000f00")
    a.lds("ds_write_b32 v13, %s" % v(T + 1))
    w = a.lds("ds_write_b32 v13, %s offset:256" % v(T))
    a("s_mov_b64 exec, -1")
    a.wait(lg=w)
    a("s_barrier")
    ML, RL, MR, RR = 100, 104, 108, 124
    for rb in range(4):
        a.lds("ds_read_b32 %s, v12 offset:%d" % (v(ML + rb), 64 * rb))
        wl = a.lds("ds_read_b32 %s, v12 offset:%d" % (v(RL + rb), 256 + 64 * rb))
    wr = {}
    for rb in range(4):
        a.lds("ds_read_b128 %s, v15 offset:%d" % (v(MR + 4 * rb, 4), 64 * rb))
        wr[rb] = a.lds("ds_read_b128 %s, v15 offset:%d" % (v(RR + 4 * rb, 4), 256 + 64 * rb))
    EPS6, E = 140, 144
    a("v_mov_b32 %s, %s" % (v(EPS6), fbits(1e-6)))
    PK, PV, PQR = 160, 168, 176

    def phi(acc, dst):
        for j in range(4):
            a("v_mul_f32 %s, %s, %s" % (v(E + j), fbits(LOG2E), v(acc + j)))
        for j in range(4):
            a("v_exp_f32_e64 %s, %s clamp" % (v(E + j), v(E + j)))
        for j in range(4):
            a("v_max_f32 %s, %s, %s" % (v(acc + j), v(acc + j), v(EPS6)))
        for j in range(4):
            a("v_add_f32 %s, %s, %s" % (v(acc + j), v(acc + j), v(E + j)))
        a("v_cvt_pk_bf16_f32 %s, %s, %s" % (v(dst), v(acc), v(acc + 1)))
        a("v_cvt_pk_bf16_f32 %s, %s, %s" % (v(dst + 1), v(acc + 2), v(acc + 3)))

    a.wait(lg=wl)
    for rb in range(4):
        acc = AQ + 4 * rb
        for j in range(4):
            a("v_fmac_f32 %s, %s, %s" % (v(acc + j), v(ML + rb), v(CQ + j)))
        for j in range(4):
            a("v_fma_f32 %s, %s, %s, %s" % (v(acc + j), v(acc + j), v(RL + rb), v(EPS6)))
        phi(acc, PQR + 2 * rb)
    a("s_lshl_b32 s4, %s, 2" % s(SJ))
    a("s_add_u32 s4, s4, %s" % s(SW))
    a("s_lshl_b32 s5, s4, 16")
    a("s_lshl_b32 s6, %s, 11" % s(SI))
    a("s_add_u32 s5, s5, s6")
    a("s_add_u32 s5, s5, %d" % PQ)
    for p in range(2):
        q = PQR + 4 * p
        a("v_permlane16_swap_b32 %s, %s" % (v(q), v(q + 2)))
        a("v_permlane16_swap_b32 %s, %s" % (v(q + 1), v(q + 3)))
        a.vmem("buffer_store_dwordx4 %s, %s, %s, s5 offen offset:%d%s" % (v(q, 4), v(VL16), s(WS, 4), 1024 * p, SC))
    for rb in range(4):
        a.wait(lg=wr[rb])
        acc = AK + 4 * rb
        for j in range(4):
            a("v_fmac_f32 %s, %s, %s" % (v(acc + j), v(MR + 4 * rb + j), v(CK)))
        for j in range(4):
            a("v_fma_f32 %s, %s, %s, %s" % (v(acc + j), v(acc + j), v(RR + 4 * rb + j), v(EPS6)))
        phi(acc, PK + 2 * rb)
        acc = AV + 4 * rb
        for j in range(4):
            a("v_fmac_f32 %s, %s, %s" % (v(acc + j), v(MR + 4 * rb + j), v(CV)))
        for j in range(4):
            a("v_mul_f32 %s, %s, %s" % (v(acc + j), v(acc + j), v(RR + 4 * rb + j)))
        a("v_cvt_pk_bf16_f32 %s, %s, %s" % (v(PV + 2 * rb), v(acc), v(acc + 1)))
        a("v_cvt_pk_bf16_f32 %s, %s, %s" % (v(PV + 2 * rb + 1), v(acc + 2), v(acc + 3)))
    KV, Z = 184, 188
    for p in range(2):
        a("%s %s, %s, %s, %s" % (MF, v(KV, 4), v(PK + 4 * p, 4), v(PV + 4 * p, 4), v(KV, 4) if p else "0"))
        a("%s %s, %s, %s, %s" % (MF, v(Z, 4), v(PK + 4 * p, 4), v(ONES, 4), v(Z, 4) if p else "0"))
    a("s_lshl_b32 s4, s4, 5")
    a("s_add_u32 s4, s4, %s" % s(SI))
    a("s_lshl_b32 s5, s4, 10")
    a("s_add_u32 s5, s5, %d" % KVP)
    a("s_lshl_b32 s6, s4, 7")
    a("s_add_u32 s6, s6, %d" % ZP)
    a.vmem("buffer_store_dwordx4 %s, %s, %s, s5 offen%s" % (v(KV, 4), v(VL16), s(WS, 4), SC))
    a("s_mov_b32 exec_lo, 0x00010001")
    a("s_mov_b32 exec_hi, 0x00010001")
    a.vmem("buffer_store_dwordx4 %s, v14, %s, s6 offen%s" % (v(Z, 4), s(WS, 4), SC))
    a("s_mov_b64 exec, -1")


VL16 = 1
VWD = 2
VTR = 6
VEX = 10
ACT = 16
BF = 80
M32 = "v_mfma_f32_32x32x16_bf16"


def setup_dma_offsets(a, pitch):
    a("v_lshrrev_b32 v12, 3, v0")
    a("v_and_b32 v13, 7, v0")
    a("v_and_b32 v14, 2, v12")
    a("v_lshlrev_b32 v14, 1, v14")
    a("v_xor_b32 v13, v13, v14")
    a("v_lshlrev_b32 v13, 4, v13")
    a("s_lshl_b32 s4, %s, 5" % s(SW))
    a("v_add_u32 v12, s4, v12")
    a("v_mul_u32_u24 v12, %d, v12" % pitch)
    a("v_add_u32 %s, v12, v13" % v(VWD))
    for j in range(1, 4):
        a("v_add_u32 %s, %d, %s" % (v(VWD + j), j * (8 * pitch - 1024), v(VWD)))


def setup_tr(a, skh, natural):
    a("v_and_b32 v12, 15, v0")
    a("v_lshrrev_b32 v13, 2, v12")
    a("v_and_b32 v14, 3, v12")
    a("v_lshrrev_b32 v15, 5, v0")
    a("v_lshl_add_u32 v15, v15, %d, v13" % (2 if natural else 3))
    a("v_lshlrev_b32 v15, 7, v15")
    a("v_lshl_add_u32 v15, v14, 3, v15")
    a("v_and_b32 v14, 16, v0")
    a("v_lshl_add_u32 v15, v14, 1, v15")
    a("v_and_b32 v13, 2, v13")
    a("v_lshl_add_u32 v15, v13, 5, v15")
    a("s_mul_i32 s4, %s, %d" % (s(skh), 8192 + 64))
    a("v_xor_b32 %s, s4, v15" % v(VTR))
    a("v_xor_b32 %s, 64, %s" % (v(VTR + 1), v(VTR)))
    a("v_add_u32 %s, 0x10000, %s" % (v(VTR + 2), v(VTR)))
    a("v_add_u32 %s, 0x10000, %s" % (v(VTR + 3), v(VTR + 1)))


def gemm(a, n, wsrd, pitch, sbw, sba, order, acc, natural, w_is_a, init0):
    SC_, SOW, SOA, SM0 = 72, 73, 74, 75
    a("s_lshl_b32 %s, %s, 12" % (s(SM0), s(SW)))
    LA = 3

    def ops(t):
        slot = t & 7
        out = []

        def w_op(j):
            def f():
                if j == 0:
                    get_chunk(a, SC_, order, t)
                    a("s_mul_i32 %s, %s, %d" % (s(SOW), s(SC_), 128 * pitch))
                    a("s_add_u32 %s, %s, %s" % (s(SOW), s(SOW), s(sbw)))
                    a("s_lshl_b32 %s, %s, 13" % (s(SOA), s(SC_)))
                    a("s_add_u32 %s, %s, %s" % (s(SOA), s(SOA), s(sba)))
                    a("s_add_u32 m0, %s, %d" % (s(SM0), slot * 16384))
                return a.vmem("buffer_load_dwordx4 %s, %s, %s offen%s lds" % (
                    v(VWD + j), s(wsrd, 4), s(SOW), " offset:%d" % (1024 * j) if j else ""))
            return f

        def a_op(j):
            def f():
                return a.vmem("buffer_load_dwordx4 %s, %s, %s, %s offen offset:%d%s" % (
                    v(ACT + 16 * (t & 3) + 4 * j, 4), v(VL16), s(WS, 4), s(SOA), 1024 * j, SC))
            return f
        for j in range(4):
            out += [w_op(j), a_op(j)]
        return out

    last = {}
    for t in range(min(LA, n)):
        for f in ops(t):
            last[t] = f()
    second = 1024 if natural else 512
    for t in range(n):
        slot = t & 7
        a.wait(vm=last[t])
        a("s_barrier")
        pend = ops(t + LA) if t + LA < n else []
        done = {}
        for q in range(4):
            for fr in range(2):
                ad = v(VTR + fr + 2 * (slot >> 2))
                off = (slot & 3) * 16384 + q * 2048
                r = BF + 8 * q + 4 * fr
                a.lds("ds_read_b64_tr_b16 %s, %s offset:%d" % (v(r, 2), ad, off))
                done[q, fr] = a.lds("ds_read_b64_tr_b16 %s, %s offset:%d" % (v(r + 2, 2), ad, off + second))
        for q in range(4):
            for fr in range(2):
                a.wait(lg=done[q, fr])
                wv = v(BF + 8 * q + 4 * fr, 4)
                av = v(ACT + 16 * (t & 3) + 4 * q, 4)
                d = v(acc + 16 * fr, 16)
                cin = d if (t or q or (fr == 0 and init0)) else "0"
                a("%s %s, %s, %s, %s" % (M32, d, wv if w_is_a else av, av if w_is_a else wv, cin))
                if pend:
                    last[t + LA] = pend.pop(0)()


def exchange(a, acc, partner_xor):
    a("s_lshl_b32 s4, %s, 12" % s(SW))
    a("s_add_u32 s4, s4, %d" % MISC)
    a("v_add_u32 %s, s4, %s" % (v(VEX), v(VL16)))
    a("v_xor_b32 %s, %d, %s" % (v(VEX + 1), partner_xor << 12, v(VEX)))
    for q in range(4):
        w = a.lds("ds_write_b128 %s, %s offset:%d" % (v(VEX), v(acc + 16 + 4 * q, 4), 1024 * q))
    a.wait(lg=w)
    a("s_barrier")
    rd = [a.lds("ds_read_b128 %s, %s offset:%d" % (v(acc + 16 + 4 * q, 4), v(VEX + 1), 1024 * q)) for q in range(4)]
    for q in range(4):
        a.wait(lg=rd[q])
        for j in range(4):
            a("v_add_f32 %s, %s, %s" % (v(acc + 4 * q + j), v(acc + 4 * q + j), v(acc + 16 + 4 * q + j)))


def phase_b(a):
    SD, SF, SKH, SPH = 44, 45, 46, 47
    ORD, SBW, SBA = 70, 76, 77
    ACC = 112
    a("s_and_b32 s4, s2, 7")
    a("s_lshr_b32 s5, s2, 3")
    a("v_lshlrev_b32 %s, 4, v0" % v(VL16))
    a("s_cmp_ge_u32 s5, 28")
    a("s_cbranch_scc1 L_helper")
    a("s_and_b32 s6, s4, 1")
    a("s_lshl_b32 s6, s6, 2")
    a("s_and_b32 s7, s5, 3")
    a("s_add_u32 %s, s6, s7" % s(SD))
    a("s_lshr_b32 s6, s4, 1")
    a("s_mul_i32 s6, s6, 7")
    a("s_lshr_b32 s7, s5, 2")
    a("s_add_u32 %s, s6, s7" % s(SF))
    a("s_and_b32 %s, %s, 1" % (s(SKH), s(SW)))
    a("s_lshr_b32 %s, %s, 1" % (s(SPH), s(SW)))
    a("s_sub_u32 s4, %s, s7" % s(SD))
    a("s_and_b32 s4, s4, 3")
    set_order(a, ORD, 16, 4, 2)
    a("v_lshrrev_b32 v12, 5, v0")
    a("v_lshlrev_b32 v12, 3, v12")
    a("s_lshl_b32 s4, %s, 7" % s(SF))
    a("s_lshl_b32 s5, %s, 6" % s(SKH))
    a("s_add_u32 s4, s4, s5")
    for i in range(4):
        bl = a.vmem("buffer_load_dwordx2 %s, v12, %s, s4 offen offset:%d" % (v(ACC + 16 + 2 * i, 2), s(B1, 4), 16 * i))
    setup_dma_offsets(a, F * 2)
    setup_tr(a, SKH, False)
    a("s_lshl_b32 %s, %s, 7" % (s(SBW), s(SF)))
    a("s_lshl_b32 s4, %s, 1" % s(SD))
    a("s_add_u32 s7, s4, %s" % s(SPH))
    a("s_lshl_b32 s4, s7, 17")
    a("s_lshl_b32 s5, %s, 12" % s(SKH))
    a("s_add_u32 s4, s4, s5")
    a("s_add_u32 %s, s4, %d" % (s(SBA), HF))
    a.wait(vm=bl)
    for i in range(8):
        a("v_lshlrev_b32 %s, 16, %s" % (v(ACC + 2 * i), v(ACC + 16 + i)))
        a("v_and_b32 %s, 0xffff0000, %s" % (v(ACC + 2 * i + 1), v(ACC + 16 + i)))
    gemm(a, 16, W1, F * 2, SBW, SBA, ORD, ACC, False, True, True)
    exchange(a, ACC, 1)
    k0 = -2.0 * 0.7978845608028654 * LOG2E
    T = 16
    a("v_mov_b32 v12, %s" % fbits(k0))
    a("s_mov_b32 s4, %s" % fbits(k0 * 0.044715))
    for r in range(16):
        a("v_mul_f32 %s, %s, %s" % (v(T + r), v(ACC + r), v(ACC + r)))
    for r in range(16):
        a("v_fma_f32 %s, %s, s4, v12" % (v(T + r), v(T + r)))
    for r in range(16):
        a("v_mul_f32 %s, %s, %s" % (v(T + r), v(T + r), v(ACC + r)))
    for r in range(16):
        a("v_exp_f32 %s, %s" % (v(T + r), v(T + r)))
    for r in range(16):
        a("v_add_f32 %s, 1.0, %s" % (v(T + r), v(T + r)))
    for r in range(16):
        a("v_rcp_f32 %s, %s" % (v(T + r), v(T + r)))
    for r in range(16):
        a("v_mul_f32 %s, %s, %s" % (v(T + r), v(T + r), v(ACC + r)))
    P = 32
    for r in range(8):
        a("v_cvt_pk_bf16_f32 %s, %s, %s" % (v(P + r), v(T + 2 * r), v(T + 2 * r + 1)))
    a("s_mul_i32 s4, s7, 112")
    a("s_lshl_b32 s5, %s, 2" % s(SF))
    a("s_add_u32 s4, s4, s5")
    a("s_lshl_b32 s5, %s, 1" % s(SKH))
    a("s_add_u32 s4, s4, s5")
    a("s_lshl_b32 s4, s4, 10")
    a("s_add_u32 s4, s4, %d" % UF)
    for q in range(2):
        a.vmem("buffer_store_dwordx4 %s, %s, %s, s4 offen offset:%d%s" % (v(P + 4 * q, 4), v(VL16), s(WS, 4), 1024 * q, SC))
    a("s_endpgm")


def helper(a):
    a.label("L_helper")
    a.restore((0, 0, 0, 0))
    SH = 44
    a("s_lshl_b32 s4, s4, 2")
    a("s_add_u32 s4, s4, s5")
    a("s_sub_u32 %s, s4, 28" % s(SH))
    a("s_lshl_b32 s4, %s, 5" % s(SH))
    a("s_lshl_b32 s5, %s, 3" % s(SW))
    a("s_add_u32 s4, s4, s5")
    a("s_lshl_b32 s5, s4, 10")
    a("s_add_u32 s5, s5, %d" % KVP)
    a("s_add_u32 s6, s5, 4096")
    a("s_lshl_b32 s7, s4, 7")
    a("s_add_u32 s7, s7, %d" % ZP)
    a("v_lshrrev_b32 v2, 4, v0")
    a("v_lshlrev_b32 v2, 4, v2")
    K, Zr, P = 16, 48, 80
    ld = []
    for t in range(8):
        a.vmem("buffer_load_dwordx4 %s, %s, %s, %s offen offset:%d%s" % (v(K + 4 * t, 4), v(VL16), s(WS, 4), "s5" if t < 4 else "s6", 1024 * (t & 3), SC))
        ld.append(a.vmem("buffer_load_dwordx4 %s, v2, %s, s7 offen offset:%d%s" % (v(Zr + 4 * t, 4), s(WS, 4), 128 * t, SC)))
    a("s_lshl_b32 s5, %s, 16" % s(SH))
    a("s_lshl_b32 s6, %s, 14" % s(SW))
    a("s_add_u32 s5, s5, s6")
    a("s_add_u32 s5, s5, %d" % PQ)
    pq = []
    for t in range(16):
        if t and t % 4 == 0:
            a("s_add_u32 s5, s5, 4096")
        pq.append(a.vmem("buffer_load_dwordx4 %s, %s, %s, s5 offen offset:%d%s" % (v(P + 4 * t, 4), v(VL16), s(WS, 4), 1024 * (t & 3), SC)))
    for t in range(1, 8):
        a.wait(vm=ld[t])
        for j in range(4):
            a("v_add_f32 %s, %s, %s" % (v(K + j), v(K + j), v(K + 4 * t + j)))
            a("v_add_f32 %s, %s, %s" % (v(Zr + j), v(Zr + j), v(Zr + 4 * t + j)))
    a("s_lshl_b32 s4, %s, 11" % s(SW))
    a("v_add_u32 v3, s4, %s" % v(VL16))
    a.lds("ds_write_b128 v3, %s" % v(K, 4))
    w = a.lds("ds_write_b128 v3, %s offset:1024" % v(Zr, 4))
    a.wait(lg=w)
    a("s_barrier")
    for t in range(4):
        a.lds("ds_read_b128 %s, %s offset:%d" % (v(K + 4 * t, 4), v(VL16), 2048 * t))
        w = a.lds("ds_read_b128 %s, %s offset:%d" % (v(Zr + 4 * t, 4), v(VL16), 2048 * t + 1024))
    a.wait(lg=w)
    for t in range(1, 4):
        for j in range(4):
            a("v_add_f32 %s, %s, %s" % (v(K + j), v(K + j), v(K + 4 * t + j)))
            a("v_add_f32 %s, %s, %s" % (v(Zr + j), v(Zr + j), v(Zr + 4 * t + j)))
    A = 4
    a("v_cvt_pk_bf16_f32 %s, %s, %s" % (v(A), v(K), v(K + 1)))
    a("v_cvt_pk_bf16_f32 %s, %s, %s" % (v(A + 1), v(K + 2), v(K + 3)))
    a("v_cvt_pk_bf16_f32 %s, %s, %s" % (v(A + 2), v(Zr), v(Zr + 1)))
    a("v_cvt_pk_bf16_f32 %s, %s, %s" % (v(A + 3), v(Zr + 2), v(Zr + 3)))
    a("v_permlane16_swap_b32 %s, %s" % (v(A), v(A + 2)))
    a("v_permlane16_swap_b32 %s, %s" % (v(A + 1), v(A + 3)))
    a("s_lshl_b32 s5, %s, 19" % s(SW))
    a("s_lshl_b32 s6, %s, 10" % s(SH))
    a("s_add_u32 s5, s5, s6")
    a("s_add_u32 s5, s5, %d" % OF)
    Dr = 16

    def mm(t):
        a.wait(vm=pq[t])
        a("%s %s, %s, %s, 0" % (M32, v(Dr + 16 * (t & 1), 16), v(A, 4), v(P + 4 * t, 4)))
    mm(0)
    for t in range(16):
        if t + 1 < 16:
            mm(t + 1)
        d = Dr + 16 * (t & 1)
        a("v_add_f32 %s, %s, %s" % (v(d + 8), fbits(1e-6), v(d + 8)))
        a("v_rcp_f32 %s, %s" % (v(d + 8), v(d + 8)))
        for j in range(8):
            a("v_mul_f32 %s, %s, %s" % (v(d + j), v(d + j), v(d + 8)))
        for j in range(4):
            a("v_cvt_pk_bf16_f32 %s, %s, %s" % (v(P + 4 * t + j), v(d + 2 * j), v(d + 2 * j + 1)))
        a.vmem("buffer_store_dwordx4 %s, %s, %s, s5 offen%s" % (v(P + 4 * t, 4), v(VL16), s(WS, 4), SC))
        a("s_add_u32 s5, s5, 32768")


def phase_cd(a):
    SS, SD, SB0, SB1 = 44, 45, 46, 47
    ORD, SBW, SBA = 70, 76, 77
    ACS, ACY, XR = 112, 144, 176
    a("s_and_b32 s4, s2, 7")
    a("s_lshr_b32 s5, s2, 3")
    a("v_lshlrev_b32 %s, 4, v0" % v(VL16))
    a("s_lshl_b32 s6, s4, 2")
    a("s_and_b32 s7, s5, 3")
    a("s_add_u32 %s, s6, s7" % s(SS))
    a("s_lshr_b32 %s, s5, 2" % s(SD))
    a("s_and_b32 %s, %s, 1" % (s(SB0), s(SW)))
    a("s_lshr_b32 %s, %s, 1" % (s(SB1), s(SW)))
    a("s_sub_u32 s79, %s, %s" % (s(SS), s(SD)))
    a("s_and_b32 s79, s79, 3")
    VO = 184
    a("v_and_b32 v12, 31, v0")
    a("v_lshrrev_b32 v13, 5, v0")
    a("v_lshlrev_b32 v13, 4, v13")
    a("v_lshl_add_u32 %s, v12, 10, v13" % v(VO))
    a("v_lshlrev_b32 v12, 1, v12")
    a("s_lshl_b32 s4, %s, 1" % s(SS))
    a("s_add_u32 s80, s4, %s" % s(SB0))
    a("s_lshl_b32 s4, %s, 1" % s(SD))
    a("s_add_u32 s81, s4, %s" % s(SB1))
    a("s_lshl_b32 s4, s80, 15")
    a("s_lshl_b32 s5, s81, 6")
    a("s_add_u32 s82, s4, s5")
    a("s_lshl_b32 s4, s80, 6")
    a.vmem("buffer_load_ushort %s, v12, %s, s4 offen" % (v(ACY), s(B2, 4)))
    for q in range(2):
        xl = a.vmem("buffer_load_dwordx4 %s, %s, %s, s82 offen offset:%d" % (v(XR + 4 * q, 4), v(VO), s(X, 4), 32 * q))
    set_order(a, ORD, 4, 79, 2)
    setup_dma_offsets(a, D * 2)
    setup_tr(a, SB1, True)
    a("s_lshl_b32 %s, %s, 7" % (s(SBW), s(SD)))
    a("s_lshl_b32 s4, s80, 15")
    a("s_lshl_b32 s5, %s, 12" % s(SB1))
    a("s_add_u32 s4, s4, s5")
    a("s_add_u32 %s, s4, %d" % (s(SBA), OF))
    gemm(a, 4, WO, D * 2, SBW, SBA, ORD, ACS, True, True, False)
    exchange(a, ACS, 2)
    set_order(a, ORD, 14, 79, 2)
    setup_dma_offsets(a, S * 2)
    setup_tr(a, SB0, True)
    a("s_lshl_b32 %s, %s, 7" % (s(SBW), s(SS)))
    a("s_mul_i32 s4, s81, %d" % (112 * 1024))
    a("s_lshl_b32 s5, %s, 12" % s(SB0))
    a("s_add_u32 s4, s4, s5")
    a("s_add_u32 %s, s4, %d" % (s(SBA), UF))
    a.wait(vm=xl)
    a("v_lshlrev_b32 %s, 16, %s" % (v(ACY), v(ACY)))
    for r in range(1, 16):
        a("v_mov_b32 %s, %s" % (v(ACY + r), v(ACY)))
    for q in range(2):
        a("v_permlane32_swap_b32 %s, %s" % (v(XR + 4 * q), v(XR + 4 * q + 2)))
        a("v_permlane32_swap_b32 %s, %s" % (v(XR + 4 * q + 1), v(XR + 4 * q + 3)))
    gemm(a, 14, W2, S * 2, SBW, SBA, ORD, ACY, True, False, True)
    exchange(a, ACY, 1)
    T, XF = 16, 32
    for r in range(16):
        a("v_mul_f32 %s, %s, %s" % (v(T + r), fbits(-LOG2E), v(ACY + r)))
    for r in range(16):
        a("v_exp_f32 %s, %s" % (v(T + r), v(T + r)))
    for r in range(8):
        a("v_lshlrev_b32 %s, 16, %s" % (v(XF + 2 * r), v(XR + r)))
        a("v_and_b32 %s, 0xffff0000, %s" % (v(XF + 2 * r + 1), v(XR + r)))
    for r in range(16):
        a("v_add_f32 %s, 1.0, %s" % (v(T + r), v(T + r)))
    for r in range(16):
        a("v_rcp_f32 %s, %s" % (v(T + r), v(T + r)))
    for r in range(16):
        a("v_mul_f32 %s, %s, %s" % (v(ACY + r), v(ACY + r), v(ACS + r)))
    for r in range(16):
        a("v_fmac_f32 %s, %s, %s" % (v(XF + r), v(ACY + r), v(T + r)))
    for r in range(8):
        a("v_cvt_pk_bf16_f32 %s, %s, %s" % (v(XR + r), v(XF + 2 * r), v(XF + 2 * r + 1)))
    for q in range(2):
        a("v_permlane32_swap_b32 %s, %s" % (v(XR + 4 * q), v(XR + 4 * q + 2)))
        a("v_permlane32_swap_b32 %s, %s" % (v(XR + 4 * q + 1), v(XR + 4 * q + 3)))
        a.vmem("buffer_store_dwordx4 %s, %s, %s, s82 offen offset:%d" % (v(XR + 4 * q, 4), v(VO), s(OUT, 4), 32 * q))


def kernel(label, tag, body):
    a = Asm()
    a(".globl %s\n.p2align 8\n.type %s,@function" % (label, label))
    a.label(label)
    prologue(a, tag)
    body(a)
    a.label("L_end_%s" % tag)
    a("s_endpgm")
    return a.text()


def descriptor(label):
    return (".amdhsa_kernel %s\n  .amdhsa_next_free_vgpr 256\n  .amdhsa_next_free_sgpr 102\n  .amdhsa_accum_offset 256\n"
            "  .amdhsa_group_segment_fixed_size 0\n  .amdhsa_kernarg_size 88\n  .amdhsa_user_sgpr_count 2\n"
            "  .amdhsa_user_sgpr_kernarg_segment_ptr 1\n  .amdhsa_system_sgpr_workgroup_id_x 1\n.end_amdhsa_kernel\n" % label)


def main(path):
    ks = [("phase_a_kernel", "a", phase_a),
          ("phase_b_kernel", "b", lambda a: (phase_b(a), helper(a))),
          (NAME + "_kernel", "cd", phase_cd)]
    out = "; generated by gen/gen1.py\n"
    for label, _, _ in ks:
        out += "; @launch kernel=%s grid=(256,1,1) block=(256,1,1) lds=%d\n" % (label, LDS_BYTES)
    out += '.amdgcn_target "amdgcn-amd-amdhsa--gfx950"\n.text\n'
    for label, tag, body in ks:
        out += kernel(label, tag, body)
    out += '.section .rodata,"a"\n'
    for label, _, _ in ks:
        out += ".p2align 6\n" + descriptor(label)
    open(path, "w").write(out)


if __name__ == "__main__":
    main(sys.argv[1])
```

```python
import sys
sys.path.insert(0, 'gen')
from asmlib import Asm
def make(src_path, out_path, kid, idx, op, mult, nwg=256):
    src = open(src_path).read()
    lines = src.split('\n')
    launch = [l for l in lines if l.startswith('; @launch')]
    name = "recurrent_scan__linear_attn_block__mixer_token_mlp__prompt_kernel"
    launch = [l if 'kernel=' in l else l.replace('@launch', '@launch kernel=' + name) for l in launch]
    body = '\n'.join(l for l in lines if not l.startswith('; @launch'))
    a = Asm()
    a(".globl probe_kernel\n.p2align 8\n.type probe_kernel,@function")
    a.label("probe_kernel")
    a("s_cmp_ge_u32 s2, 1\ns_cbranch_scc1 L_pend")
    a("s_load_dwordx2 s[8:9], s[0:1], 80\ns_waitcnt lgkmcnt(0)\ns_mov_b32 s10, 0xa00000\ns_mov_b32 s11, 0x20000")
    a("v_lshlrev_b32 v1, 8, v0")
    for q in range(4):
        a("s_mov_b32 s4, %d" % (0x980000 + q * 16384))
        a("buffer_load_dword v%d, v1, s[8:11], s4 offen sc1" % (2 + q))
        a("s_mov_b32 s4, %d" % (0x980000 + kid * 65536 + min(q, (nwg - 1) // 64 if nwg % 64 == 0 else 2) * 16384 + idx * 4))
        a("buffer_load_dword v%d, v1, s[8:11], s4 offen sc1" % (6 + q))
    a("s_waitcnt vmcnt(0)")
    a("v_min_u32 v2, v2, v3\nv_min_u32 v4, v4, v5\nv_min_u32 v2, v2, v4")
    a("v_readlane_b32 s5, v2, 0")
    for l in range(1, 64):
        a("v_readlane_b32 s6, v2, %d\ns_nop 1\ns_min_u32 s5, s5, s6" % l)
    for q in range(4):
        a("v_subrev_u32 v%d, s5, v%d" % (6 + q, 6 + q))
    vop, sop = {"max": ("v_max_u32", "s_max_u32"), "mean": ("v_add_u32", "s_add_u32"), "min": ("v_min_u32", "s_min_u32")}[op]
    a("%s v6, v6, v7\n%s v8, v8, v9\n%s v6, v6, v8" % (vop, vop, vop))
    a("v_readlane_b32 s7, v6, 0")
    for l in range(1, 64):
        a("v_readlane_b32 s6, v6, %d\ns_nop 1\n%s s7, s7, s6" % (l, sop))
    a("s_mul_i32 s7, s7, %d" % mult)
    if op == "mean":
        a("s_lshr_b32 s7, s7, 8")
    a("s_min_u32 s7, s7, 200000")
    a("s_memrealtime s[12:13]\ns_waitcnt lgkmcnt(0)")
    a.label("L_spin")
    a("s_memrealtime s[14:15]\ns_waitcnt lgkmcnt(0)\ns_sub_u32 s6, s14, s12\ns_cmp_lt_u32 s6, s7\ns_cbranch_scc1 L_spin")
    a.label("L_pend")
    a("s_endpgm")
    desc = '''.p2align 6
.amdhsa_kernel probe_kernel
  .amdhsa_next_free_vgpr 16
  .amdhsa_next_free_sgpr 32
  .amdhsa_accum_offset 16
  .amdhsa_group_segment_fixed_size 0
  .amdhsa_kernarg_size 88
  .amdhsa_user_sgpr_count 2
  .amdhsa_user_sgpr_kernarg_segment_ptr 1
  .amdhsa_system_sgpr_workgroup_id_x 1
.end_amdhsa_kernel
'''
    b2 = body.replace('.section .rodata,"a"', a.text() + '.section .rodata,"a"') + desc
    E = '; @launch kernel=probe_kernel grid=(1,1,1) block=(64,1,1) lds=0'
    open(out_path, 'w').write('\n'.join(launch + [E]) + '\n' + b2)
if __name__ == "__main__":
    src = sys.argv[1]
    for spec in sys.argv[2:]:
        kid, idx, op, mult = spec.split(',')[:4]
        nwg = int(spec.split(',')[4]) if spec.count(',') > 3 else 256
        make(src, "q_%s_%s_%s_%s.s" % (kid, idx, op, mult), int(kid), int(idx), op, int(mult), nwg)
```

```python
import re

TRANS = ("v_exp_f32", "v_log_f32", "v_rcp_f32", "v_rsq_f32", "v_sqrt_f32", "v_sin_f32", "v_cos_f32")
REG_RE = re.compile(r"^(-?)\|?(?:abs\()?([vsa])(?:(\d+)|\[(\d+):(\d+)\])\)?\|?$")


def regs_of(tok):
    tok = tok.strip()
    if tok in ("vcc", "vcc_lo", "vcc_hi"):
        return {("s", "vcc")}
    if tok in ("exec", "exec_lo", "exec_hi"):
        return {("s", "exec")}
    if tok == "m0":
        return {("s", "m0")}
    m = REG_RE.match(tok)
    if not m:
        return set()
    f = m.group(2)
    if m.group(3) is not None:
        lo = hi = int(m.group(3))
    else:
        lo, hi = int(m.group(4)), int(m.group(5))
    return {(f, i) for i in range(lo, hi + 1)}


class Ins:
    __slots__ = ("text", "op", "kind", "wr", "rd", "srcc", "srcab", "passes", "dpp", "states", "wide", "lds_dma", "lanesel")

    def __init__(self, text):
        self.text = text
        body = text.split(";")[0].strip()
        parts = body.split(None, 1)
        self.op = parts[0] if parts else ""
        rest = parts[1] if len(parts) > 1 else ""
        toks = [(t.split() or [""])[0] for t in rest.split(",")] if rest else []
        mods = rest
        op = self.op
        self.wr, self.rd = set(), set()
        self.srcc, self.srcab, self.lanesel = set(), set(), set()
        self.passes = 0
        self.dpp = "_dpp" in op or "row_" in rest or "quad_perm" in rest
        self.states = 1
        self.wide = False
        self.lds_dma = False
        R = [regs_of(t) for t in toks]
        if op.endswith(":") or op.startswith(".") or not op:
            self.kind = "meta"
            self.states = 0
        elif op == "s_nop":
            self.kind = "salu"
            self.states = int(toks[0], 0) + 1
        elif op.startswith("v_mfma"):
            self.kind = "mfma"
            self.passes = 8 if "32x32" in op else 4
            self.wr = R[0]
            self.srcab = R[1] | R[2]
            self.srcc = R[3]
            self.rd = self.srcab | self.srcc
        elif op.startswith("v_"):
            self.kind = "valu"
            self.wr = set(R[0])
            srcs = R[1:]
            if "_co_" in op:
                self.wr |= R[1]
                srcs = R[2:]
            for r in srcs:
                self.rd |= r
            if op.startswith(("v_fmac", "v_dot2c", "v_writelane")) or "_dpp" in op:
                self.rd |= R[0]
            if "permlane" in op:
                self.wr |= R[1]
                self.rd |= R[0]
            if op.startswith(("v_readlane", "v_writelane")) and len(R) > 2:
                self.lanesel = R[2]
            if op.startswith("v_dot"):
                self.srcab = R[1] | R[2]
            if op.startswith("v_cmpx"):
                self.wr.add(("s", "exec"))
        elif op.startswith("ds_"):
            self.kind = "ds"
            if op.startswith(("ds_read", "ds_bpermute", "ds_permute", "ds_swizzle")):
                self.wr = R[0]
                for r in R[1:]:
                    self.rd |= r
            else:
                for r in R:
                    self.rd |= r
        elif op.startswith(("buffer_", "global_")):
            self.kind = "vmem"
            is_lds = re.search(r"\blds\b", mods) is not None or "load_lds" in op
            self.lds_dma = is_lds
            if "load" in op and not is_lds:
                self.wr = R[0]
                for r in R[1:]:
                    self.rd |= r
            elif "atomic" in op and "sc0" in mods:
                self.wr = R[0]
                for r in R:
                    self.rd |= r
            else:
                for r in R:
                    self.rd |= r
            if is_lds:
                self.rd.add(("s", "m0"))
            if "store" in op and ("x4" in op or "x3" in op):
                self.wide = True
        elif op.startswith("s_"):
            self.kind = "salu"
            if op.startswith(("s_cmp", "s_cbranch", "s_branch", "s_waitcnt", "s_barrier", "s_endpgm", "s_sleep", "s_setprio", "s_bitcmp")):
                for r in R:
                    self.rd |= r
            else:
                if R:
                    self.wr = set(R[0])
                for r in R[1:]:
                    self.rd |= r
                if "saveexec" in op:
                    self.wr.add(("s", "exec"))
        else:
            raise ValueError("unknown instruction: " + text)
        if "@skip" in text:
            self.states = 0


def _need(p, c):
    n = 0
    vw = {r for r in p.wr if r[0] in "va"}
    sw = {r for r in p.wr if r[0] == "s"}
    if p.kind == "valu":
        if c.kind == "mfma" and vw & c.rd:
            n = max(n, 2)
        if c.kind == "valu":
            if c.dpp and vw & c.rd:
                n = max(n, 2)
            if "permlane" in c.op and vw & c.rd:
                n = max(n, 2)
            if c.op.startswith(("v_readlane", "v_readfirstlane")) and vw & c.rd:
                n = max(n, 1)
            if p.op.startswith(TRANS) and vw & c.rd:
                n = max(n, 1)
            if p.op.startswith("v_dot") and vw & (c.rd | c.wr) and not (c.op == p.op and not vw & c.srcab):
                n = max(n, 3)
            if "sdwa" in p.op and vw & (c.rd | c.wr):
                n = max(n, 1)
            if sw & c.rd:
                n = max(n, 2)
            if sw & c.lanesel:
                n = max(n, 4)
            if ("s", "exec") in sw:
                n = max(n, 5)
        if c.kind == "vmem" and sw & c.rd:
            n = max(n, 5)
        if c.kind == "mfma" and ("s", "exec") in sw:
            n = max(n, 4)
        if c.kind == "salu" and sw & c.rd:
            n = max(n, 1)
    if p.kind == "mfma":
        big = {4: 8, 8: 12}[p.passes]
        if c.kind == "mfma":
            if p.wr & c.srcab:
                n = max(n, big)
            if p.wr & c.srcc and not (p.wr == c.srcc and p.passes == c.passes):
                n = max(n, {4: 6, 8: 10}[p.passes])
            if p.wr & c.wr and not (p.wr & c.srcc):
                n = max(n, big)
        elif c.kind in ("valu", "vmem", "ds"):
            if p.wr & (c.rd | c.wr):
                n = max(n, big)
            if c.kind == "valu" and p.srcc & c.wr:
                n = max(n, {4: 3, 8: 7}[p.passes])
    if p.kind == "salu" and ("s", "m0") in p.wr and c.kind == "vmem" and c.lds_dma:
        n = max(n, 1)
    if p.kind == "vmem" and p.wide and c.kind == "valu":
        if {r for r in p.rd if r[0] in "va"} & c.wr:
            n = max(n, 2)
    if p.kind in ("vmem", "ds") and c.kind == "valu" and c.dpp and vw & c.rd:
        n = max(n, 2)
    return n


def pad_hazards(lines):
    out = []
    hist = []
    for text in lines:
        ins = Ins(text)
        if ins.kind == "meta":
            out.append(text)
            continue
        need = 0
        dist = 0
        for p in reversed(hist):
            k = _need(p, ins) - dist
            if k > need:
                need = k
            dist += p.states
            if dist >= 20:
                break
        while need > 0:
            k = min(need, 16)
            nop = "s_nop %d" % (k - 1)
            out.append("    " + nop)
            hist.append(Ins(nop))
            need -= k
        out.append(text)
        hist.append(ins)
        if len(hist) > 40:
            del hist[:20]
    return out


class Asm:
    def __init__(self):
        self.lines = []
        self.vm = 0
        self.vm_done = 0
        self.lg = 0
        self.lg_done = 0
        self.feeder = None
        self.period = 0
        self.acc = 0
        self.busy = 0

    def __call__(self, s):
        for ln in s.strip("\n").split("\n"):
            ln = ln.strip()
            if not ln:
                continue
            self.lines.append(ln if ln.endswith(":") or ln.startswith(".") else "    " + ln)
            if self.feeder and not self.busy and ln.startswith("v_"):
                self.acc += 2 if ln.startswith(TRANS) else 1
                if self.acc >= self.period:
                    self.acc = 0
                    self.busy += 1
                    self.feeder()
                    self.busy -= 1

    def auto(self, feeder=None, period=0):
        self.feeder, self.period, self.acc = feeder, period, 0

    def hold(self):
        self.busy += 1

    def release(self):
        self.busy -= 1

    def label(self, name):
        self.lines.append(name + ":")

    def comment(self, s):
        self.lines.append("    ; " + s)

    def vmem(self, s):
        self(s)
        self.vm += 1
        return self.vm

    def lds(self, s):
        self(s)
        self.lg += 1
        return self.lg

    def wait(self, vm=None, lg=None):
        parts = []
        if vm is not None and vm > self.vm_done:
            n = min(self.vm - vm, 63)
            parts.append("vmcnt(%d)" % n)
            self.vm_done = self.vm - n
        if lg is not None and lg > self.lg_done:
            n = min(self.lg - lg, 15)
            parts.append("lgkmcnt(%d)" % n)
            self.lg_done = self.lg - n
        if parts:
            self("s_waitcnt " + " ".join(parts))

    def wait_all(self):
        self("s_waitcnt vmcnt(0) lgkmcnt(0)")
        self.vm_done = self.vm
        self.lg_done = self.lg

    def state(self):
        return (self.vm, self.vm_done, self.lg, self.lg_done)

    def restore(self, st):
        self.vm, self.vm_done, self.lg, self.lg_done = st

    def text(self):
        return "\n".join(pad_hazards(self.lines)) + "\n"


def v(i, n=1):
    return "v%d" % i if n == 1 else "v[%d:%d]" % (i, i + n - 1)


def s(i, n=1):
    return "s%d" % i if n == 1 else "s[%d:%d]" % (i, i + n - 1)


def ar(i, n=1):
    return "a%d" % i if n == 1 else "a[%d:%d]" % (i, i + n - 1)
```

```python
import struct
import sys
from asmlib import Asm, v, s, ar

NAME = "recurrent_scan__linear_attn_block__mixer_token_mlp__prompt"
S, D, F = 2048, 512, 1792

HF, UF, PQ, OF, KVP, ZP = 0x000000, 0x200000, 0x400000, 0x600000, 0x800000, 0x900000
STAMP_OFF = 0x980000
FLG = 0x9C0000
FB1, FB2, FB3, FB4, EPOCH = FLG, FLG + 0x2000, FLG + 0x4000, FLG + 0x5000, FLG + 0xF000
WS_BYTES = 0xA00000
TAG_STEP = 0x5BD3A6C7
SPIN_LIMIT = 100000

X, WQKV, WO, W1, W2, WS, OUT, B1, B2 = 8, 12, 16, 20, 24, 28, 32, 36, 40
SW = 3
SI, SJ, SB0, SB1 = 44, 45, 46, 47
TAG, XCD, SL = 64, 65, 66
BD, BFT, CS, CD = 67, 68, 69, 70
SBLK, DBLK, SOUT = 48, 49, 50
ORDA, ORDB, ORDC, ORDD = 71, 52, 54, 56
AWB, AXB = 72, 73
WB = {"B": 58, "C": 59, "D": 60}
AB = {"B": 61, "C": 62, "D": 63}
SOW, SOA, SCH, SM0A, SM0, SPIN = 74, 75, 76, 77, 78, 79
BDBLK, SPO = 80, 81

LDS_BYTES = 160 * 1024
MISC = 128 * 1024
LOG2E = 1.4426950408889634
SC = " sc1"

VL16 = 1
VW, VX, VA, VS_, VB = 2, 4, 6, 10, 14
ONES = 20
AQ, AK, AV, CQ, CK, CV, GG, SX = 24, 40, 56, 72, 76, 80, 84, 88
FR = 96
VWD = {"B": 192, "C": 196, "D": 200}
VTR = {"B": 204, "C": 208, "D": 212}
VEX, VO, VP, VPD = 216, 218, 219, 252
ACC = {"B": 220, "C": 24, "D": 56}
XR = 88
NB = 6
ACT, BFR = 0, 96
M16 = "v_mfma_f32_16x16x32_bf16"
M32 = "v_mfma_f32_32x32x16_bf16"

PH = {"B": dict(g0=0, n=16, srd=W1, pitch=F * 2, order=ORDB, natural=False, w_is_a=True),
      "C": dict(g0=16, n=4, srd=WO, pitch=D * 2, order=ORDC, natural=True, w_is_a=True),
      "D": dict(g0=20, n=14, srd=W2, pitch=S * 2, order=ORDD, natural=True, w_is_a=False)}
NG = 34

OPT = dict(stamps=False, lead=2, rot=True, codepf=True)


def phase_of(g):
    return "B" if g < 16 else "C" if g < 20 else "D"


def fbits(x):
    return "0x%08x" % struct.unpack("<I", struct.pack("<f", x))[0]


def order_seq(n, r, lead):
    return sorted(range(n), key=lambda c: (c - lead - 0.5) if c % 4 == r else c)


def set_order(a, dst, n, sres):
    for r in range(4):
        w = 0
        for t, c in enumerate(order_seq(n, r, OPT["lead"])):
            w |= c << (4 * t)
        words = [w & 0xFFFFFFFF] + ([w >> 32] if n > 8 else [])
        if r:
            a("s_cmp_eq_u32 %s, %d" % (s(sres), r))
        for k, word in enumerate(words):
            if r:
                a("s_cselect_b32 %s, 0x%x, %s" % (s(dst + k), word, s(dst + k)))
            else:
                a("s_mov_b32 %s, 0x%x" % (s(dst + k), word))


def get_chunk(a, dst, order, t):
    a("s_bfe_u32 %s, %s, 0x%x" % (s(dst), s(order + (t >> 3)), (4 << 16) | (4 * (t & 7))))


class K:
    def __init__(self, a):
        self.a = a
        self.nst = 0
        self.nlab = 0
        self.queue = []
        self.wid = {}
        self.aid = {}
        self.uid = {}
        self.free_slots = set()
        self.reads_done = -1
        self.mfma_done = -1
        self.flags = set()

    def stamp(self):
        if not OPT["stamps"]:
            return
        a = self.a
        a.hold()
        a("s_memrealtime s[100:101]")
        if self.nst == 0:
            a("v_mov_b32 v255, 0")
        a("s_waitcnt lgkmcnt(0)")
        a.lg_done = a.lg
        a("v_writelane_b32 v255, s100, %d" % self.nst)
        a.release()
        self.nst += 1
        assert self.nst <= 32

    def flush_stamps(self):
        if not OPT["stamps"]:
            return
        a = self.a
        a.wait_all()
        self.stamp()
        a("s_lshl_b32 s4, s2, 9")
        a("s_lshl_b32 s5, %s, 7" % s(SW))
        a("s_add_u32 s4, s4, s5")
        a("s_add_u32 s4, s4, %d" % STAMP_OFF)
        a("v_lshlrev_b32 v3, 2, v0")
        a("s_mov_b32 exec_hi, 0")
        a("buffer_store_dword v255, v3, %s, s4 offen" % s(WS, 4))
        a("s_mov_b64 exec, -1")

    def push_unit(self, u):
        for g in range(4):
            for j in range(2):
                self.queue.append(("U", u, g, j))

    def push_w(self, g):
        for j in range(4):
            self.queue.append(("W", g, j))

    def push_a(self, g):
        for j in range(4):
            self.queue.append(("A", g, j))

    def push_wa(self, g):
        for j in range(4):
            self.queue.append(("W", g, j))
            self.queue.append(("A", g, j))

    def ready(self, it):
        if it[0] == "U":
            return {2 * (it[1] & 3), 2 * (it[1] & 3) + 1} <= self.free_slots or (it[2], it[3]) != (0, 0)
        if it[0] == "W":
            return it[2] != 0 or (it[1] & 7) in self.free_slots
        g = it[1]
        return phase_of(g) in self.flags and g - NB <= self.mfma_done

    def feed(self, n=1):
        a = self.a
        for _ in range(n):
            if not self.queue or not self.ready(self.queue[0]):
                return
            it = self.queue.pop(0)
            if it[0] == "U":
                _, u, g, j = it
                slot = u & 3
                if (g, j) == (0, 0):
                    self.free_slots -= {2 * slot, 2 * slot + 1}
                    get_chunk(a, SCH, ORDA, u)
                    a("s_mul_i32 %s, %s, %d" % (s(SOW), s(SCH), 64 * 3072))
                    a("s_add_u32 %s, %s, %s" % (s(SOW), s(SOW), s(AWB)))
                    a("s_lshl_b32 %s, %s, 7" % (s(SOA), s(SCH)))
                    a("s_add_u32 %s, %s, %s" % (s(SOA), s(SOA), s(AXB)))
                if j == 0:
                    if g in (1, 2):
                        a("s_add_u32 %s, %s, 1024" % (s(SOW), s(SOW)))
                    a("s_add_u32 m0, %s, %d" % (s(SM0A), slot * 32768 + g * 8192))
                off = " offset:1024" if j else ""
                if g < 3:
                    self.uid[u] = a.vmem("buffer_load_dwordx4 %s, %s, %s offen%s lds" % (v(VW + j), s(WQKV, 4), s(SOW), off))
                else:
                    self.uid[u] = a.vmem("buffer_load_dwordx4 %s, %s, %s offen%s lds" % (v(VX + j), s(X, 4), s(SOA), off))
            elif it[0] == "W":
                _, g, j = it
                ph = phase_of(g)
                p = PH[ph]
                if j == 0:
                    self.free_slots.discard(g & 7)
                    get_chunk(a, SCH, p["order"], g - p["g0"])
                    a("s_mul_i32 %s, %s, %d" % (s(SOW), s(SCH), 128 * p["pitch"]))
                    a("s_add_u32 %s, %s, %s" % (s(SOW), s(SOW), s(WB[ph])))
                    a("s_add_u32 m0, %s, %d" % (s(SM0), (g & 7) * 16384))
                i = a.vmem("buffer_load_dwordx4 %s, %s, %s offen%s lds" % (
                    v(VWD[ph] + j), s(p["srd"], 4), s(SOW), " offset:%d" % (1024 * j) if j else ""))
                if j == 3:
                    self.wid[g] = i
            else:
                _, g, j = it
                ph = phase_of(g)
                p = PH[ph]
                if j == 0:
                    get_chunk(a, SCH, p["order"], g - p["g0"])
                    a("s_lshl_b32 %s, %s, 13" % (s(SOA), s(SCH)))
                    a("s_add_u32 %s, %s, %s" % (s(SOA), s(SOA), s(AB[ph])))
                i = a.vmem("buffer_load_dwordx4 %s, %s, %s, %s offen offset:%d%s" % (
                    ar(ACT + 16 * (g % NB) + 4 * j, 4), v(VL16), s(WS, 4), s(SOA), 1024 * j, SC))
                if j == 3:
                    self.aid[g] = i

    def need(self, table, key):
        while key not in table:
            n = len(self.queue)
            self.feed()
            assert len(self.queue) < n, ("stream stalled", key, self.queue[:2])

    def barrier(self):
        self.a("s_barrier")
        for g in range(max(0, self.reads_done - 7), self.reads_done + 1):
            if g in self.wid and g not in self.released:
                self.released.add(g)
                self.free_slots.add(g & 7)

    released = None

    def signal(self, base, sidx):
        a = self.a
        self.nlab += 1
        lab = "L_sig%s%d" % (self.tag, self.nlab)
        a.hold()
        a("s_cmp_lg_u32 %s, 0" % s(SW))
        a("s_cbranch_scc1 %s" % lab)
        a("s_lshr_b32 s4, %s, 3 ; @skip" % s(sidx))
        a("s_lshl_b32 s4, s4, 7 ; @skip")
        a("s_and_b32 s5, %s, 7 ; @skip" % s(sidx))
        a("s_lshl_b32 s5, s5, 2 ; @skip")
        a("s_add_u32 s4, s4, s5 ; @skip")
        a("s_add_u32 s4, s4, %d ; @skip" % base)
        a("v_mov_b32 %s, %s ; @skip" % (v(VPD + 1), s(TAG)))
        a("s_mov_b64 exec, 1 ; @skip")
        a("buffer_store_dword %s, off, %s, s4%s ; @skip" % (v(VPD + 1), s(WS, 4), SC))
        a("s_mov_b64 exec, -1 ; @skip")
        a.label(lab)
        a.release()

    def poll_issue(self, vaddr):
        return self.a.vmem("buffer_load_dword %s, %s, %s, %s offen%s" % (v(VPD), v(vaddr), s(WS, 4), s(SPO), SC))

    def poll_check(self, pid, vaddr):
        a = self.a
        self.nlab += 1
        ok, spin = "L_ok%s%d" % (self.tag, self.nlab), "L_spin%s%d" % (self.tag, self.nlab)
        a.hold()
        a.wait(vm=pid)
        a("v_cmp_ne_u32 vcc, %s, %s" % (s(TAG), v(VPD)))
        a("s_cbranch_vccz %s" % ok)
        a("s_mov_b32 %s, %d ; @skip" % (s(SPIN), SPIN_LIMIT))
        a.label(spin)
        a("buffer_load_dword %s, %s, %s, %s offen%s ; @skip" % (v(VPD), v(vaddr), s(WS, 4), s(SPO), SC))
        a("s_waitcnt vmcnt(0) ; @skip")
        a("v_cmp_ne_u32 vcc, %s, %s ; @skip" % (s(TAG), v(VPD)))
        a("s_cbranch_vccz %s ; @skip" % ok)
        a("s_sub_u32 %s, %s, 1 ; @skip" % (s(SPIN), s(SPIN)))
        a("s_cmp_lg_u32 %s, 0 ; @skip" % s(SPIN))
        a("s_cbranch_scc1 %s ; @skip" % spin)
        a.label(ok)
        a.release()


def prologue(k):
    a = k.a
    a("s_cmp_ge_u32 s2, 256")
    a("s_cbranch_scc1 L_end")
    k.stamp()
    a("s_load_dwordx2 %s, s[0:1], 0" % s(X, 2))
    a("s_load_dwordx2 %s, s[0:1], 8" % s(WQKV, 2))
    a("s_load_dwordx2 %s, s[0:1], 80" % s(WS, 2))
    a("s_load_dwordx16 s[48:63], s[0:1], 16")
    a("v_lshrrev_b32 v1, 6, v0")
    a("v_and_b32 v0, 63, v0")
    a("v_readfirstlane_b32 %s, v1" % s(SW))
    for srd, size in ((X, S * D * 2), (WQKV, D * 3 * D * 2), (WO, D * D * 2), (W1, S * F * 2),
                      (B1, F * 2), (W2, F * S * 2), (B2, S * 2), (OUT, S * D * 2), (WS, WS_BYTES)):
        a("s_mov_b32 %s, 0x%x" % (s(srd + 2), size))
        a("s_mov_b32 %s, 0x20000" % s(srd + 3))
    a("s_and_b32 %s, s2, 7" % s(XCD))
    a("s_lshr_b32 %s, s2, 3" % s(SL))
    a("v_lshlrev_b32 %s, 4, v0" % v(VL16))
    a("s_and_b32 s6, %s, 3" % s(XCD))
    a("s_lshl_b32 s4, s6, 3")
    a("s_and_b32 s7, %s, 7" % s(SL))
    a("s_add_u32 %s, s4, s7" % s(SI))
    a("s_and_b32 s5, %s, 4" % s(XCD))
    a("s_lshr_b32 s7, %s, 3" % s(SL))
    a("s_add_u32 %s, s5, s7" % s(SJ))
    a("s_sub_u32 s4, %s, %s" % (s(SI), s(SJ)))
    a("s_and_b32 s4, s4, 3")
    set_order(a, ORDA, 8, 4)
    if OPT["rot"]:
        a("s_lshl_b32 s6, s6, 1")
        a("s_xor_b32 s6, s6, s5")
        a("s_mul_i32 s6, s6, 0x11111111")
        a("s_xor_b32 %s, %s, s6" % (s(ORDA), s(ORDA)))
    a("s_lshl_b32 %s, %s, 7" % (s(AWB), s(SJ)))
    a("s_lshl_b32 %s, %s, 16" % (s(AXB), s(SI)))
    a("s_lshl_b32 %s, %s, 11" % (s(SM0A), s(SW)))
    a("s_lshl_b32 %s, %s, 12" % (s(SM0), s(SW)))
    a("v_lshrrev_b32 v16, 3, v0")
    a("v_and_b32 v17, 7, v0")
    a("s_lshl_b32 s4, %s, 4" % s(SW))
    a("v_add_u32 v18, s4, v16")
    a("v_and_b32 v19, 2, v16")
    a("v_xor_b32 v19, v19, v17")
    a("v_lshlrev_b32 v19, 4, v19")
    a("v_mul_u32_u24 v92, 3072, v18")
    a("v_add_u32 %s, v92, v19" % v(VW))
    a("v_xor_b32 v19, 64, v19")
    a("v_add_u32 v92, %d, v92" % (8 * 3072 - 1024))
    a("v_add_u32 %s, v92, v19" % v(VW + 1))
    a("v_lshrrev_b32 v19, 1, v16")
    a("v_xor_b32 v19, v19, v17")
    a("v_lshlrev_b32 v19, 4, v19")
    a("v_lshl_add_u32 %s, v18, 10, v19" % v(VX))
    a("v_xor_b32 v19, 64, %s" % v(VX))
    a("v_add_u32 %s, %d, v19" % (v(VX + 1), 8 * 1024 - 1024))
    a("s_lshl_b32 s5, %s, 13" % s(SJ))
    a("s_add_u32 s4, %s, s5" % s(AXB))
    a("s_add_u32 s4, s4, %s" % s(SM0A))
    a("s_waitcnt lgkmcnt(0)")
    LNX = FR
    a.vmem("buffer_load_dwordx4 %s, %s, %s, s4 offen" % (v(LNX, 4), v(VL16), s(X, 4)))
    ln = a.vmem("buffer_load_dwordx4 %s, %s, %s, s4 offen offset:1024" % (v(LNX + 4, 4), v(VL16), s(X, 4)))
    a("s_add_u32 s6, %s, %d" % (s(WS), EPOCH))
    a("s_addc_u32 s7, %s, 0" % s(WS + 1))
    a("s_load_dword %s, s[6:7], 0" % s(TAG))
    k.free_slots = set(range(8))
    k.released = set()
    for u in range(8):
        k.push_unit(u)
    k.feed(8)
    for srd, src in ((WO, 48), (W1, 52), (B1, 54), (W2, 56), (B2, 58), (OUT, 60)):
        a("s_mov_b64 %s, %s" % (s(srd, 2), s(src, 2)))
    if OPT["codepf"]:
        a("s_getpc_b64 s[6:7]")
        a.label("L_pc")
        a("s_lshl_b32 s4, %s, 2" % s(SL))
        a("s_add_u32 s4, s4, %s" % s(SW))
        a("s_lshl_b32 s4, s4, 9")
        a("v_and_b32 v16, 3, v0")
        a("v_lshl_add_u32 v16, v16, 7, s4")
        a("v_min_u32 v16, L_end-L_pc, v16")
        a.vmem("global_load_dword v254, v16, s[6:7]")
    return ln


def setup_a_reads(a):
    a("v_and_b32 v16, 15, v0")
    a("v_lshrrev_b32 v17, 4, v0")
    a("v_lshrrev_b32 v18, 1, v16")
    a("v_xor_b32 v18, v18, v17")
    a("v_lshlrev_b32 v18, 4, v18")
    a("v_lshl_add_u32 v18, v16, 7, v18")
    a("v_add_u32 %s, %d, v18" % (v(VA), 24576))
    a("v_xor_b32 %s, 64, %s" % (v(VA + 1), v(VA)))
    a("v_add_u32 %s, 0x10000, %s" % (v(VA + 2), v(VA)))
    a("v_add_u32 %s, 0x10000, %s" % (v(VA + 3), v(VA + 1)))
    for q in range(4):
        a("v_add_u32 %s, %s, %s" % (v(VS_ + q), s(SM0A), v(VA + q)))
    a("v_lshrrev_b32 v18, 2, v16")
    a("v_and_b32 v19, 3, v16")
    a("v_lshrrev_b32 v92, 1, v18")
    a("v_and_b32 v93, 1, v17")
    a("v_lshl_add_u32 v92, v93, 1, v92")
    a("v_xor_b32 v92, %s, v92" % s(SW))
    a("v_lshlrev_b32 v92, 5, v92")
    a("v_lshl_add_u32 v92, v19, 3, v92")
    a("v_lshl_add_u32 v93, v17, 3, v18")
    a("v_lshl_add_u32 %s, v93, 7, v92" % v(VB))
    a("v_add_u32 %s, 0x10000, %s" % (v(VB + 1), v(VB)))
    a("v_lshlrev_b32 v94, 10, v18")
    a("v_lshl_add_u32 v94, v17, 5, v94")
    a("v_lshl_add_u32 v94, v19, 3, v94")
    a("s_lshl_b32 s4, %s, 8" % s(SW))
    a("s_add_u32 s4, s4, %d" % MISC)
    a("v_add_u32 v94, s4, v94")
    a("v_lshrrev_b32 v95, 5, v0")
    a("v_lshlrev_b32 v95, 17, v95")
    a("v_and_b32 v16, 31, v0")
    a("v_lshl_add_u32 v95, v16, 4, v95")
    for q in range(4):
        a("v_mov_b32 %s, 0x3f803f80" % v(ONES + q))


def layernorm(k, ln):
    a = k.a
    LNX, T, R = FR, FR + 8, FR + 24
    a.wait(vm=ln)
    k.stamp()
    for q in range(4):
        for r in range(2):
            x = v(LNX + 4 * r + q)
            a("v_dot2_f32_bf16 %s, %s, %s, %s" % (v(R + 2 * r), x, v(ONES), v(R + 2 * r) if q else "0"))
            a("v_dot2_f32_bf16 %s, %s, %s, %s" % (v(R + 2 * r + 1), x, x, v(R + 2 * r + 1) if q else "0"))
    for r in range(2):
        for q in range(4):
            a("v_lshlrev_b32 %s, 16, %s" % (v(T + 8 * r + 2 * q), v(LNX + 4 * r + q)))
            a("v_and_b32 %s, 0xffff0000, %s" % (v(T + 8 * r + 2 * q + 1), v(LNX + 4 * r + q)))
    regs = [R, R + 1, R + 2, R + 3]
    for mod in ("row_shr:1", "row_shr:2", "row_shr:4", "row_shr:8"):
        for r in regs:
            a("v_add_f32_dpp %s, %s, %s %s row_mask:0xf bank_mask:0xf bound_ctrl:1" % (v(r), v(r), v(r), mod))
    for r in regs:
        a("v_add_f32_dpp %s, %s, %s row_bcast:15 row_mask:0xa bank_mask:0xf" % (v(r), v(r), v(r)))
    for r in regs:
        a("v_add_f32_dpp %s, %s, %s row_bcast:31 row_mask:0xc bank_mask:0xf" % (v(r), v(r), v(r)))
    E = R + 4
    a("v_mov_b32 %s, %s" % (v(E), fbits(1e-5)))
    for r in range(2):
        a("v_mul_f32 %s, %s, %s" % (v(R + 2 * r), fbits(-1.0 / D), v(R + 2 * r)))
    for r in range(2):
        a("v_mul_f32 %s, %s, %s" % (v(R + 2 * r + 1), fbits(1.0 / D), v(R + 2 * r + 1)))
    for r in range(2):
        a("v_fma_f32 %s, -%s, %s, %s" % (v(R + 2 * r + 1), v(R + 2 * r), v(R + 2 * r), v(R + 2 * r + 1)))
    for r in range(2):
        a("v_max_f32 %s, 0, %s" % (v(R + 2 * r + 1), v(R + 2 * r + 1)))
    for r in range(2):
        a("v_add_f32 %s, %s, %s" % (v(E + 1 + r), v(R + 2 * r + 1), v(E)))
    for r in range(2):
        a("v_rsq_f32 %s, %s" % (v(E + 1 + r), v(E + 1 + r)))
    for r in range(2):
        a("v_mul_f32 %s, %s, %s" % (v(R + 2 * r + 1), v(R + 2 * r + 1), v(E + 1 + r)))
    for r in range(2):
        a("v_fma_f32 %s, %s, %s, %s" % (v(R + 2 * r + 1), v(R + 2 * r + 1), v(E + 1 + r), v(E)))
    for r in range(2):
        a("v_rsq_f32 %s, %s" % (v(R + 2 * r + 1), v(R + 2 * r + 1)))
    for r in range(2):
        a("v_mul_f32 %s, %s, %s" % (v(R + 2 * r + 1), v(R + 2 * r + 1), v(E + 1 + r)))
    for r in range(2):
        a("v_mul_f32 %s, %s, %s" % (v(R + 2 * r), v(R + 2 * r), v(R + 2 * r + 1)))
    for q in range(4):
        a("v_readlane_b32 %s, %s, 63" % (s(4 + q), v(R + q)))
    for r in range(2):
        for q in range(4):
            t = v(T + 8 * r + 2 * q, 2)
            a("v_pk_fma_f32 %s, %s, %s, %s op_sel:[0,1,0] op_sel_hi:[1,1,0]" % (t, t, s(4 + 2 * r, 2), s(4 + 2 * r, 2)))
    for r in range(2):
        for q in range(4):
            a("v_cvt_pk_bf16_f32 %s, %s, %s" % (v(LNX + 4 * r + q), v(T + 8 * r + 2 * q), v(T + 8 * r + 2 * q + 1)))
    a("s_add_u32 s4, %s, %d" % (s(SM0A), MISC))
    a("v_add_u32 v16, s4, %s" % v(VL16))
    a.lds("ds_write_b128 v16, %s" % v(LNX, 4))
    w = a.lds("ds_write_b128 v16, %s offset:1024" % v(LNX + 4, 4))
    a("s_lshl_b32 s4, %s, 3" % s(SI))
    a("s_add_u32 s4, s4, %s" % s(SJ))
    a("s_lshl_b32 s4, s4, 9")
    a("s_lshl_b32 s5, %s, 19" % s(SW))
    a("s_add_u32 s4, s4, s5")
    a("s_add_u32 s4, s4, %d" % HF)
    a("s_add_u32 s5, s4, %d" % (2 << 17))
    a.wait(vm=k.uid[0], lg=w)
    a("s_add_u32 %s, %s, 0x%x" % (s(TAG), s(TAG), TAG_STEP))
    a("s_barrier")
    H = FR + 64
    for it in range(2):
        a.lds("ds_read_b64_tr_b16 %s, v94 offset:%d" % (v(H + 4 * it, 2), 128 * it))
        w = a.lds("ds_read_b64_tr_b16 %s, v94 offset:%d" % (v(H + 4 * it + 2, 2), 128 * it + 4096))
    for f in a_reads(a, 0):
        f()
    a.wait(lg=w)
    a.vmem("buffer_store_dwordx4 %s, v95, %s, s4 offen%s" % (v(H, 4), s(WS, 4), SC))
    return a.vmem("buffer_store_dwordx4 %s, v95, %s, s5 offen%s" % (v(H + 4, 4), s(WS, 4), SC))


def a_reads(a, n):
    u, kk = n >> 1, n & 1
    slot = u & 3
    fr = FR + 32 * (n & 1)
    hi, ob = slot >> 1, (slot & 1) * 32768
    out = []
    for g in range(3):
        for h in range(2):
            out.append("ds_read_b64_tr_b16 %s, %s offset:%d" % (v(fr + 20 + 4 * g + 2 * h, 2), v(VB + hi), ob + kk * 4096 + g * 8192 + 512 * h))
    for rb in range(4):
        out.append("ds_read_b128 %s, %s offset:%d" % (v(fr + 4 * rb, 4), v(VA + kk + 2 * hi), ob + rb * 2048))
    out.append("ds_read_b128 %s, %s offset:%d" % (v(fr + 16, 4), v(VS_ + kk + 2 * hi), ob))
    return [(lambda t=t: a.lds(t)) for t in out]


def a_step(k, n, top=None, after=None):
    a = k.a
    u, kk = n >> 1, n & 1
    if kk:
        if u + 1 < 8:
            while ("U", u + 1, 3, 1) in k.queue:
                k.feed()
            a.wait(vm=k.uid[u + 1])
        if top:
            top()
        a.wait(lg=a.lg)
        a("s_barrier")
        k.free_slots |= {2 * (u & 3), 2 * (u & 3) + 1}
        if after:
            after()
    else:
        a.wait(lg=a.lg)
    fr = FR + 32 * (n & 1)

    def c(r):
        return "0" if n == 0 else v(r, 4)
    bq, bk, bv, xs, one = v(fr + 20, 4), v(fr + 24, 4), v(fr + 28, 4), v(fr + 16, 4), v(ONES, 4)
    seq = []
    for rb in range(4):
        x = v(fr + 4 * rb, 4)
        seq.append((AQ + 4 * rb, bq, x))
        seq.append((AK + 4 * rb, x, bk))
        seq.append((AV + 4 * rb, x, bv))
    seq = [(GG, xs, xs), (SX, xs, one), (CQ, bq, one), (CK, one, bk), (CV, one, bv)] + seq
    reads = a_reads(a, n + 1) if n + 1 < 16 else []
    for i, (d, x, y) in enumerate(seq):
        a("%s %s, %s, %s, %s" % (M16, v(d, 4), x, y, c(d)))
        if reads:
            reads.pop(0)()
        if i % 4 == 2:
            k.feed()


def epilogue_a(k):
    a = k.a
    a("s_mov_b32 s4, 0xaaaaaaaa")
    a("s_mov_b32 s5, 0xaaaaaaaa")
    a("s_mov_b32 s6, 0xcccccccc")
    a("s_mov_b32 s7, 0xcccccccc")
    T = FR
    STAT = MISC + 8192
    a("v_and_b32 v16, 15, v0")
    a("v_lshlrev_b32 v16, 2, v16")
    a("v_add_u32 v16, %d, v16" % STAT)
    a("v_lshl_add_u32 v17, %s, 6, v16" % s(SW))
    a("v_and_b32 v18, 48, v0")
    a("v_add_u32 v19, %d, v18" % STAT)
    for i, src in enumerate((GG, SX)):
        a("v_cndmask_b32 %s, %s, %s, s[4:5]" % (v(T + 2), v(src), v(src + 1)))
        a("v_cndmask_b32 %s, %s, %s, s[4:5]" % (v(T + 3), v(src + 2), v(src + 3)))
        a("v_cndmask_b32 %s, %s, %s, s[6:7]" % (v(T + i), v(T + 2), v(T + 3)))
    a("v_mul_f32 %s, %s, %s" % (v(T + 1), fbits(-1.0 / D), v(T + 1)))
    a("v_mul_f32 %s, %s, %s" % (v(T), fbits(1.0 / D), v(T)))
    a("v_fma_f32 %s, -%s, %s, %s" % (v(T), v(T + 1), v(T + 1), v(T)))
    a("v_max_f32 %s, 0, %s" % (v(T), v(T)))
    a("v_add_f32 %s, %s, %s" % (v(T), fbits(1e-5), v(T)))
    a("v_rsq_f32 %s, %s" % (v(T), v(T)))
    a.hold()
    a("s_mov_b32 exec_lo, 0x00f0000f")
    a("s_mov_b32 exec_hi, 0xf0000f00")
    a.lds("ds_write_b32 v17, %s" % v(T + 1))
    w = a.lds("ds_write_b32 v17, %s offset:256" % v(T))
    a("s_mov_b64 exec, -1")
    a.release()
    a.wait(lg=w)
    a("s_barrier")
    ML, MR, RR = FR + 4, FR + 12, FR + 28
    for rb in range(4):
        wl = a.lds("ds_read2_b32 %s, v16 offset0:%d offset1:%d" % (v(ML + 2 * rb, 2), 16 * rb, 64 + 16 * rb))
    wr = {}
    for rb in range(4):
        a.lds("ds_read_b128 %s, v19 offset:%d" % (v(MR + 4 * rb, 4), 64 * rb))
        wr[rb] = a.lds("ds_read_b128 %s, v19 offset:%d" % (v(RR + 4 * rb, 4), 256 + 64 * rb))
    E = FR + 44
    PK, PV, PQR, KV, Z = FR + 52, FR + 60, FR + 68, FR + 76, FR + 80
    a("s_mov_b32 s4, %s" % fbits(1e-6))
    a("s_mov_b32 s5, %s" % fbits(LOG2E))

    def phi(acc, dst):
        for j in (0, 2):
            a("v_pk_mul_f32 %s, %s, s[4:5] op_sel:[0,1] op_sel_hi:[1,1]" % (v(E + j, 2), v(acc + j, 2)))
        for j in range(4):
            a("v_exp_f32_e64 %s, %s clamp" % (v(E + j), v(E + j)))
        for j in range(4):
            a("v_max_f32 %s, s4, %s" % (v(acc + j), v(acc + j)))
        for j in (0, 2):
            a("v_pk_add_f32 %s, %s, %s" % (v(acc + j, 2), v(acc + j, 2), v(E + j, 2)))
        a("v_cvt_pk_bf16_f32 %s, %s, %s" % (v(dst), v(acc), v(acc + 1)))
        a("v_cvt_pk_bf16_f32 %s, %s, %s" % (v(dst + 1), v(acc + 2), v(acc + 3)))

    for rb in range(4):
        a.wait(lg=wr[rb])
        for acc, cs in ((AK + 4 * rb, CK), (AV + 4 * rb, CV)):
            for j in (0, 2):
                a("v_pk_fma_f32 %s, %s, %s, %s" % (v(acc + j, 2), v(MR + 4 * rb + j, 2), v(cs, 2), v(acc + j, 2)))
        acc = AK + 4 * rb
        for j in (0, 2):
            a("v_pk_fma_f32 %s, %s, %s, s[4:5] op_sel_hi:[1,1,0]" % (v(acc + j, 2), v(acc + j, 2), v(RR + 4 * rb + j, 2)))
        acc = AV + 4 * rb
        for j in (0, 2):
            a("v_pk_mul_f32 %s, %s, %s" % (v(acc + j, 2), v(acc + j, 2), v(RR + 4 * rb + j, 2)))
        phi(AK + 4 * rb, PK + 2 * rb)
        a("v_cvt_pk_bf16_f32 %s, %s, %s" % (v(PV + 2 * rb), v(acc), v(acc + 1)))
        a("v_cvt_pk_bf16_f32 %s, %s, %s" % (v(PV + 2 * rb + 1), v(acc + 2), v(acc + 3)))
    for p in range(2):
        a("%s %s, %s, %s, %s" % (M16, v(KV, 4), v(PK + 4 * p, 4), v(PV + 4 * p, 4), v(KV, 4) if p else "0"))
        a("%s %s, %s, %s, %s" % (M16, v(Z, 4), v(PK + 4 * p, 4), v(ONES, 4), v(Z, 4) if p else "0"))
    a("s_lshl_b32 s6, %s, 2" % s(SJ))
    a("s_add_u32 s6, s6, %s" % s(SW))
    a("s_lshl_b32 s6, s6, 5")
    a("s_add_u32 s6, s6, %s" % s(SI))
    a("s_lshl_b32 s82, s6, 10")
    a("s_add_u32 s82, s82, %d" % KVP)
    a("s_lshl_b32 s83, s6, 7")
    a("s_add_u32 s83, s83, %d" % ZP)
    a("s_lshl_b32 s7, s6, 11")
    a("s_add_u32 s7, s7, %d" % PQ)
    for rb in range(4):
        acc = AQ + 4 * rb
        m = v(ML + 2 * rb, 2)
        for j in (0, 2):
            a("v_pk_fma_f32 %s, %s, %s, %s op_sel_hi:[0,1,1]" % (v(acc + j, 2), m, v(CQ + j, 2), v(acc + j, 2)))
        for j in (0, 2):
            a("v_pk_fma_f32 %s, %s, %s, s[4:5] op_sel:[0,1,0] op_sel_hi:[1,1,0]" % (v(acc + j, 2), v(acc + j, 2), m))
        phi(acc, PQR + 2 * rb)
        if rb == 0:
            a.vmem("buffer_store_dwordx4 %s, %s, %s, s82 offen%s" % (v(KV, 4), v(VL16), s(WS, 4), SC))
            a.hold()
            a("s_mov_b32 exec_lo, 0x00010001")
            a("s_mov_b32 exec_hi, 0x00010001")
            a.vmem("buffer_store_dwordx4 %s, v18, %s, s83 offen%s" % (v(Z, 4), s(WS, 4), SC))
            a("s_mov_b64 exec, -1")
            a.release()
        if rb & 1:
            q = PQR + 2 * (rb - 1)
            a("v_permlane16_swap_b32 %s, %s" % (v(q), v(q + 2)))
            a("v_permlane16_swap_b32 %s, %s" % (v(q + 1), v(q + 3)))
            st = a.vmem("buffer_store_dwordx4 %s, %s, %s, s7 offen offset:%d%s" % (v(q, 4), v(VL16), s(WS, 4), 512 * (rb - 1), SC))
    return st


def setup_bcd(a):
    a("s_and_b32 %s, %s, 1" % (s(SB0), s(SW)))
    a("s_lshr_b32 %s, %s, 1" % (s(SB1), s(SW)))
    a("s_and_b32 s6, %s, 1" % s(XCD))
    a("s_lshl_b32 s4, s6, 2")
    a("s_and_b32 s5, %s, 3" % s(SL))
    a("s_add_u32 %s, s4, s5" % s(BD))
    a("s_lshr_b32 s4, %s, 1" % s(XCD))
    a("s_mul_i32 s4, s4, 7")
    a("s_lshr_b32 %s, %s, 2" % (s(CD), s(SL)))
    a("s_add_u32 %s, s4, %s" % (s(BFT), s(CD)))
    a("s_lshl_b32 s4, %s, 2" % s(XCD))
    a("s_add_u32 %s, s4, s5" % s(CS))
    a("s_sub_u32 s7, s5, %s" % s(CD))
    a("s_and_b32 s7, s7, 3")
    set_order(a, ORDB, 16, 7)
    set_order(a, ORDC, 4, 7)
    set_order(a, ORDD, 14, 7)
    if OPT["rot"]:
        a("s_mul_i32 s6, s6, 0x88888888")
        a("s_xor_b32 %s, %s, s6" % (s(ORDB), s(ORDB)))
        a("s_xor_b32 %s, %s, s6" % (s(ORDB + 1), s(ORDB + 1)))
    a("s_lshl_b32 %s, %s, 7" % (s(WB["B"]), s(BFT)))
    a("s_lshl_b32 %s, %s, 7" % (s(WB["C"]), s(CD)))
    a("s_lshl_b32 %s, %s, 7" % (s(WB["D"]), s(CS)))
    a("s_lshl_b32 s4, %s, 1" % s(BD))
    a("s_add_u32 %s, s4, %s" % (s(BDBLK), s(SB1)))
    a("s_lshl_b32 s4, %s, 1" % s(CS))
    a("s_add_u32 %s, s4, %s" % (s(SBLK), s(SB0)))
    a("s_lshl_b32 s4, %s, 1" % s(CD))
    a("s_add_u32 %s, s4, %s" % (s(DBLK), s(SB1)))
    a("s_lshl_b32 s5, %s, 12" % s(SB0))
    a("s_lshl_b32 s6, %s, 12" % s(SB1))
    a("s_lshl_b32 s4, %s, 17" % s(BDBLK))
    a("s_add_u32 s4, s4, s5")
    a("s_add_u32 %s, s4, %d" % (s(AB["B"]), HF))
    a("s_lshl_b32 s4, %s, 15" % s(SBLK))
    a("s_lshl_b32 s7, %s, 6" % s(DBLK))
    a("s_add_u32 %s, s4, s7" % s(SOUT))
    a("s_add_u32 s4, s4, s6")
    a("s_add_u32 %s, s4, %d" % (s(AB["C"]), OF))
    a("s_mul_i32 s4, %s, %d" % (s(DBLK), 112 * 1024))
    a("s_add_u32 s4, s4, s5")
    a("s_add_u32 %s, s4, %d" % (s(AB["D"]), UF))
    a("v_lshrrev_b32 v16, 3, v0")
    a("v_and_b32 v17, 7, v0")
    a("v_lshlrev_b32 v18, 7, v16")
    a("v_lshl_add_u32 %s, v17, 2, v18" % v(VP))
    a("v_and_b32 v18, 2, v16")
    a("v_lshlrev_b32 v18, 1, v18")
    a("v_xor_b32 v17, v17, v18")
    a("v_lshlrev_b32 v17, 4, v17")
    a("v_lshl_add_u32 v16, %s, 5, v16" % s(SW))
    for ph in "BCD":
        pitch = PH[ph]["pitch"]
        a("v_mul_u32_u24 v18, %d, v16" % pitch)
        a("v_add_u32 %s, v18, v17" % v(VWD[ph]))
        for j in range(1, 4):
            a("v_add_u32 %s, %d, %s" % (v(VWD[ph] + j), j * (8 * pitch - 1024), v(VWD[ph])))
    a("v_bfe_u32 v16, v0, 2, 2")
    a("v_and_b32 v17, 3, v0")
    a("v_lshlrev_b32 v17, 3, v17")
    a("v_lshl_add_u32 v17, v16, 7, v17")
    a("v_and_b32 v18, 16, v0")
    a("v_lshl_add_u32 v17, v18, 1, v17")
    a("v_and_b32 v16, 2, v16")
    a("v_lshl_add_u32 v17, v16, 5, v17")
    a("v_lshrrev_b32 v18, 5, v0")
    a("s_mul_i32 s5, %s, %d" % (s(SB0), 8192 + 64))
    a("s_mul_i32 s6, %s, %d" % (s(SB1), 8192 + 64))
    for ph, sk in (("B", 5), ("C", 6), ("D", 5)):
        t = VTR[ph]
        a("v_lshl_add_u32 v19, v18, %d, v17" % (9 if PH[ph]["natural"] else 10))
        a("v_xor_b32 %s, s%d, v19" % (v(t), sk))
        a("v_xor_b32 %s, 64, %s" % (v(t + 1), v(t)))
        a("v_add_u32 %s, 0x10000, %s" % (v(t + 2), v(t)))
        a("v_add_u32 %s, 0x10000, %s" % (v(t + 3), v(t + 1)))
    a("s_add_u32 s4, %s, %d" % (s(SM0), MISC + 16384))
    a("v_add_u32 %s, s4, %s" % (v(VEX), v(VL16)))
    a("v_and_b32 v16, 31, v0")
    a("v_lshlrev_b32 v18, 4, v18")
    a("v_lshl_add_u32 %s, v16, 10, v18" % v(VO))


def g_reads(a, g):
    ph = phase_of(g)
    slot = g & 7
    second = 1024 if PH[ph]["natural"] else 512
    out = []
    for q in range(4):
        for fr in range(2):
            ad = v(VTR[ph] + fr + 2 * (slot >> 2))
            off = (slot & 3) * 16384 + q * 2048
            r = BFR + 32 * (g & 1) + 8 * q + 4 * fr
            out.append(("ds_read_b64_tr_b16 %s, %s offset:%d" % (ar(r, 2), ad, off),
                        "ds_read_b64_tr_b16 %s, %s offset:%d" % (ar(r + 2, 2), ad, off + second)))
    return out


def first_reads(k, g, top=None, after=None):
    a = k.a
    k.need(k.wid, g)
    a.wait(vm=k.wid[g])
    if top:
        top()
    k.barrier()
    if after:
        after()
    k.rd = []
    for r0, r1 in g_reads(a, g):
        a.lds(r0)
        k.rd.append(a.lds(r1))


def g_iter(k, g, nfeed, init0, top=None, after=None):
    a = k.a
    ph = phase_of(g)
    p = PH[ph]
    k.need(k.aid, g)
    need = k.aid[g]
    if g + 1 < NG:
        k.need(k.wid, g + 1)
        need = max(need, k.wid[g + 1])
    a.wait(vm=need)
    if top:
        top()
    if g + 1 < NG:
        k.barrier()
    if after:
        after()
    nxt = g_reads(a, g + 1) if g + 1 < NG else []
    rd, k.rd = k.rd, []
    fed = 0
    for i in range(8):
        q, fr = i >> 1, i & 1
        a.wait(lg=rd[i])
        wv = ar(BFR + 32 * (g & 1) + 8 * q + 4 * fr, 4)
        av = ar(ACT + 16 * (g % NB) + 4 * q, 4)
        d = v(ACC[ph] + 16 * fr, 16)
        cin = d if (g > p["g0"] or q or (fr == 0 and init0)) else "0"
        a("%s %s, %s, %s, %s" % (M32, d, wv if p["w_is_a"] else av, av if p["w_is_a"] else wv, cin))
        if nxt:
            a.lds(nxt[i][0])
            k.rd.append(a.lds(nxt[i][1]))
        want = (nfeed * (i + 1) + 7) // 8
        k.feed(want - fed)
        fed = want
    k.reads_done = g
    k.mfma_done = g


def exchange(k, acc, partner_xor, top=None, after=None):
    a = k.a
    a("v_xor_b32 %s, %d, %s" % (v(VEX + 1), partner_xor << 12, v(VEX)))
    for q in range(4):
        w = a.lds("ds_write_b128 %s, %s offset:%d" % (v(VEX), v(acc + 16 + 4 * q, 4), 1024 * q))
    if top:
        top()
    a.wait(lg=w)
    k.barrier()
    if after:
        after()
    rd = [a.lds("ds_read_b128 %s, %s offset:%d" % (v(acc + 16 + 4 * q, 4), v(VEX + 1), 1024 * q)) for q in range(4)]
    for q in range(4):
        a.wait(lg=rd[q])
        for j in (0, 2):
            a("v_pk_add_f32 %s, %s, %s" % (v(acc + 4 * q + j, 2), v(acc + 4 * q + j, 2), v(acc + 16 + 4 * q + j, 2)))


def load_bias_b(k):
    a = k.a
    a("v_lshrrev_b32 v16, 5, v0")
    a("v_lshlrev_b32 v16, 3, v16")
    a("s_lshl_b32 s4, %s, 7" % s(BFT))
    a("s_lshl_b32 s5, %s, 6" % s(SB0))
    a("s_add_u32 s4, s4, s5")
    for i in range(4):
        bl = a.vmem("buffer_load_dwordx2 %s, v16, %s, s4 offen offset:%d" % (v(ACC["B"] + 16 + 2 * i, 2), s(B1, 4), 16 * i))
    return bl


def unpack_bias_b(k, bl):
    a = k.a
    A = ACC["B"]
    a.wait(vm=bl)
    for i in range(8):
        a("v_lshlrev_b32 %s, 16, %s" % (v(A + 2 * i), v(A + 16 + i)))
        a("v_and_b32 %s, 0xffff0000, %s" % (v(A + 2 * i + 1), v(A + 16 + i)))


def epilogue_b(k):
    a = k.a
    A, T, P = ACC["B"], FR, FR + 16
    exchange(k, A, 1)
    k0 = -2.0 * 0.7978845608028654 * LOG2E
    a("s_mov_b32 s4, %s" % fbits(k0 * 0.044715))
    a("s_mov_b32 s5, %s" % fbits(k0))
    a("s_mul_i32 s6, %s, 112" % s(BDBLK))
    a("s_lshl_b32 s7, %s, 2" % s(BFT))
    a("s_add_u32 s6, s6, s7")
    a("s_lshl_b32 s7, %s, 1" % s(SB0))
    a("s_add_u32 s6, s6, s7")
    a("s_lshl_b32 s6, s6, 10")
    a("s_add_u32 s6, s6, %d" % UF)
    for h in range(2):
        rs = range(8 * h, 8 * h + 8)
        for r in rs[::2]:
            a("v_pk_mul_f32 %s, %s, %s" % (v(T + r, 2), v(A + r, 2), v(A + r, 2)))
        for r in rs[::2]:
            a("v_pk_fma_f32 %s, %s, s[4:5], s[4:5] op_sel:[0,0,1] op_sel_hi:[1,0,1]" % (v(T + r, 2), v(T + r, 2)))
        for r in rs[::2]:
            a("v_pk_mul_f32 %s, %s, %s" % (v(T + r, 2), v(T + r, 2), v(A + r, 2)))
        for r in rs:
            a("v_exp_f32 %s, %s" % (v(T + r), v(T + r)))
        for r in rs[::2]:
            a("v_pk_add_f32 %s, %s, 1.0 op_sel_hi:[1,0]" % (v(T + r, 2), v(T + r, 2)))
        for r in rs:
            a("v_rcp_f32 %s, %s" % (v(T + r), v(T + r)))
        for r in rs[::2]:
            a("v_pk_mul_f32 %s, %s, %s" % (v(T + r, 2), v(T + r, 2), v(A + r, 2)))
        for r in rs[::2]:
            a("v_cvt_pk_bf16_f32 %s, %s, %s" % (v(P + r // 2), v(T + r), v(T + r + 1)))
        st = a.vmem("buffer_store_dwordx4 %s, %s, %s, s6 offen offset:%d%s" % (v(P + 4 * h, 4), v(VL16), s(WS, 4), 1024 * h, SC))
    return st


def load_residual(k):
    a = k.a
    a("v_and_b32 v16, 31, v0")
    a("v_lshlrev_b32 v16, 1, v16")
    a("s_lshl_b32 s4, %s, 6" % s(SBLK))
    a.vmem("buffer_load_ushort %s, v16, %s, s4 offen" % (v(ACC["D"]), s(B2, 4)))
    for q in range(2):
        xl = a.vmem("buffer_load_dwordx4 %s, %s, %s, %s offen offset:%d" % (v(XR + 4 * q, 4), v(VO), s(X, 4), s(SOUT), 32 * q))
    return xl


XF = FR + 32


def unpack_residual(k, xl):
    a = k.a
    Y = ACC["D"]
    a.wait(vm=xl)
    a("v_lshlrev_b32 %s, 16, %s" % (v(Y), v(Y)))
    for r in range(1, 16):
        a("v_mov_b32 %s, %s" % (v(Y + r), v(Y)))
    for q in range(2):
        a("v_permlane32_swap_b32 %s, %s" % (v(XR + 4 * q), v(XR + 4 * q + 2)))
        a("v_permlane32_swap_b32 %s, %s" % (v(XR + 4 * q + 1), v(XR + 4 * q + 3)))
    for r in range(8):
        a("v_lshlrev_b32 %s, 16, %s" % (v(XF + 2 * r), v(XR + r)))
        a("v_and_b32 %s, 0xffff0000, %s" % (v(XF + 2 * r + 1), v(XR + r)))


def epilogue_d(k):
    a = k.a
    Y, Sr, T = ACC["D"], ACC["C"], FR
    exchange(k, Y, 1)
    a("s_mov_b32 s4, %s" % fbits(-LOG2E))
    for h in range(2):
        rs = range(8 * h, 8 * h + 8)
        for r in rs[::2]:
            a("v_pk_mul_f32 %s, %s, s[4:5] op_sel_hi:[1,0]" % (v(T + r, 2), v(Y + r, 2)))
        for r in rs:
            a("v_exp_f32 %s, %s" % (v(T + r), v(T + r)))
        for r in rs[::2]:
            a("v_pk_mul_f32 %s, %s, %s" % (v(Y + r, 2), v(Y + r, 2), v(Sr + r, 2)))
        for r in rs[::2]:
            a("v_pk_add_f32 %s, %s, 1.0 op_sel_hi:[1,0]" % (v(T + r, 2), v(T + r, 2)))
        for r in rs:
            a("v_rcp_f32 %s, %s" % (v(T + r), v(T + r)))
        for r in rs[::2]:
            a("v_pk_fma_f32 %s, %s, %s, %s" % (v(XF + r, 2), v(Y + r, 2), v(T + r, 2), v(XF + r, 2)))
        for r in rs[::2]:
            a("v_cvt_pk_bf16_f32 %s, %s, %s" % (v(XR + r // 2), v(XF + r), v(XF + r + 1)))
        a("v_permlane32_swap_b32 %s, %s" % (v(XR + 4 * h), v(XR + 4 * h + 2)))
        a("v_permlane32_swap_b32 %s, %s" % (v(XR + 4 * h + 1), v(XR + 4 * h + 3)))
        a.vmem("buffer_store_dwordx4 %s, %s, %s, %s offen offset:%d" % (v(XR + 4 * h, 4), v(VO), s(OUT, 4), s(SOUT), 32 * h))


def helper_job(k):
    a = k.a
    SH = BD
    a("s_lshl_b32 s4, %s, 5" % s(SH))
    a("s_lshl_b32 s5, %s, 3" % s(SW))
    a("s_add_u32 s4, s4, s5")
    a("s_lshl_b32 s5, s4, 10")
    a("s_add_u32 s5, s5, %d" % KVP)
    a("s_add_u32 s6, s5, 4096")
    a("s_lshl_b32 s7, s4, 7")
    a("s_add_u32 s7, s7, %d" % ZP)
    a("v_and_b32 v16, 48, v0")
    Kr, Zr, P, A = 24, 56, FR, 92
    ld = []
    for t in range(8):
        a.vmem("buffer_load_dwordx4 %s, %s, %s, %s offen offset:%d%s" % (v(Kr + 4 * t, 4), v(VL16), s(WS, 4), "s5" if t < 4 else "s6", 1024 * (t & 3), SC))
        ld.append(a.vmem("buffer_load_dwordx4 %s, v16, %s, s7 offen offset:%d%s" % (v(Zr + 4 * t, 4), s(WS, 4), 128 * t, SC)))
    a("s_lshl_b32 s5, s4, 11")
    a("s_add_u32 s5, s5, %d" % PQ)
    pq = []
    for t in range(16):
        if t and t % 4 == 0:
            a("s_add_u32 s5, s5, 4096")
        pq.append(a.vmem("buffer_load_dwordx4 %s, %s, %s, s5 offen offset:%d%s" % (v(P + 4 * t, 4), v(VL16), s(WS, 4), 1024 * (t & 3), SC)))
    for t in range(1, 8):
        a.wait(vm=ld[t])
        for j in (0, 2):
            a("v_pk_add_f32 %s, %s, %s" % (v(Kr + j, 2), v(Kr + j, 2), v(Kr + 4 * t + j, 2)))
            a("v_pk_add_f32 %s, %s, %s" % (v(Zr + j, 2), v(Zr + j, 2), v(Zr + 4 * t + j, 2)))
    a("v_add_u32 v17, %d, %s" % (MISC, v(VL16)))
    a("v_add_u32 v16, %s, v17" % s(SM0A))
    a.lds("ds_write_b128 v16, %s" % v(Kr, 4))
    w = a.lds("ds_write_b128 v16, %s offset:1024" % v(Zr, 4))
    a.wait(lg=w)
    a("s_barrier")
    for t in range(4):
        a.lds("ds_read_b128 %s, v17 offset:%d" % (v(Kr + 4 * t, 4), 2048 * t))
        w = a.lds("ds_read_b128 %s, v17 offset:%d" % (v(Zr + 4 * t, 4), 2048 * t + 1024))
    a.wait(lg=w)
    for t in range(1, 4):
        for j in (0, 2):
            a("v_pk_add_f32 %s, %s, %s" % (v(Kr + j, 2), v(Kr + j, 2), v(Kr + 4 * t + j, 2)))
            a("v_pk_add_f32 %s, %s, %s" % (v(Zr + j, 2), v(Zr + j, 2), v(Zr + 4 * t + j, 2)))
    a("v_cvt_pk_bf16_f32 %s, %s, %s" % (v(A), v(Kr), v(Kr + 1)))
    a("v_cvt_pk_bf16_f32 %s, %s, %s" % (v(A + 1), v(Kr + 2), v(Kr + 3)))
    a("v_cvt_pk_bf16_f32 %s, %s, %s" % (v(A + 2), v(Zr), v(Zr + 1)))
    a("v_cvt_pk_bf16_f32 %s, %s, %s" % (v(A + 3), v(Zr + 2), v(Zr + 3)))
    a("v_permlane16_swap_b32 %s, %s" % (v(A), v(A + 2)))
    a("v_permlane16_swap_b32 %s, %s" % (v(A + 1), v(A + 3)))
    a("s_lshl_b32 s5, %s, 19" % s(SW))
    a("s_lshl_b32 s6, %s, 10" % s(SH))
    a("s_add_u32 s5, s5, s6")
    a("s_add_u32 s5, s5, %d" % OF)
    Dr = 24

    def mm(t):
        a.wait(vm=pq[t])
        a("%s %s, %s, %s, 0" % (M32, v(Dr + 16 * (t & 1), 16), v(A, 4), v(P + 4 * t, 4)))
    mm(0)
    for t in range(16):
        if t + 1 < 16:
            mm(t + 1)
        d = Dr + 16 * (t & 1)
        a("v_add_f32 %s, %s, %s" % (v(d + 8), fbits(1e-6), v(d + 8)))
        a("v_rcp_f32 %s, %s" % (v(d + 8), v(d + 8)))
        for j in range(0, 8, 2):
            a("v_pk_mul_f32 %s, %s, %s op_sel_hi:[1,0]" % (v(d + j, 2), v(d + j, 2), v(d + 8, 2)))
        for j in range(4):
            a("v_cvt_pk_bf16_f32 %s, %s, %s" % (v(P + 4 * t + j), v(d + 2 * j), v(d + 2 * j + 1)))
        st = a.vmem("buffer_store_dwordx4 %s, %s, %s, s5 offen%s" % (v(P + 4 * t, 4), v(VL16), s(WS, 4), SC))
        a("s_add_u32 s5, s5, 32768")
    return st


def tail_cd(k, xl, ust):
    a = k.a
    for g in range(16, 20):
        if g == 19 and ust:
            a("s_lshl_b32 s82, %s, 5" % s(BD))
            a("s_add_u32 s82, s82, %s" % s(BFT))
            g_iter(k, g, 4, False, top=lambda: a.wait(vm=ust), after=lambda: k.signal(FB4, 82))
        else:
            g_iter(k, g, 4, False)
    k.stamp()
    a.auto(k.feed, 6)
    exchange(k, ACC["C"], 2)
    unpack_residual(k, xl)
    a.auto()
    k.feed(64)
    a("v_and_b32 v16, 31, v0")
    a("v_min_u32 v16, 27, v16")
    a("v_lshrrev_b32 v17, 3, v16")
    a("v_and_b32 v16, 7, v16")
    a("v_lshlrev_b32 v17, 7, v17")
    a("v_lshl_add_u32 v16, v16, 2, v17")
    a("s_lshl_b32 s4, %s, 9" % s(CD))
    a("s_add_u32 %s, s4, %d" % (s(SPO), FB4))
    pid = k.poll_issue(16)
    k.poll_check(pid, 16)
    k.barrier()
    k.stamp()
    k.flags.add("D")
    for g in range(20, 26):
        k.push_a(g)
    for g in range(26, NG):
        if g + 2 < NG:
            k.push_w(g + 2)
        k.push_a(g)
    k.feed(16)
    for g in range(20, NG):
        g_iter(k, g, 8, True)
        if g in (20, 26):
            k.stamp()
    k.stamp()
    assert not k.queue
    epilogue_d(k)
    k.stamp()
    k.flush_stamps()
    a("s_endpgm")


def main_path(k):
    a = k.a
    k.tag = "m"
    st = {}
    k.push_w(0)
    k.push_w(1)
    k.push_a(0)
    k.push_a(1)
    for g in range(2, 16):
        k.push_wa(g)

    def issue_b1():
        a("s_lshl_b32 s4, %s, 10" % s(SW))
        a("s_add_u32 %s, s4, %d" % (s(SPO), FB1))
        st["p"] = k.poll_issue(VP)
        st["b"] = load_bias_b(k)

    def epoch():
        k.flags.add("B")
        a("s_or_b32 s4, s2, %s" % s(SW))
        a("s_cmp_lg_u32 s4, 0")
        a("s_cbranch_scc1 L_epoch")
        a("v_mov_b32 %s, %s ; @skip" % (v(VPD + 1), s(TAG)))
        a("s_mov_b32 s4, %d ; @skip" % EPOCH)
        a("s_mov_b64 exec, 1 ; @skip")
        a("buffer_store_dword %s, off, %s, s4%s ; @skip" % (v(VPD + 1), s(WS, 4), SC))
        a("s_mov_b64 exec, -1 ; @skip")
        a.label("L_epoch")
    for n in range(9, 16):
        if n == 9:
            a_step(k, n, after=issue_b1)
        elif n == 11:
            a_step(k, n, top=lambda: k.poll_check(st["p"], VP), after=epoch)
        else:
            a_step(k, n)
    k.stamp()
    a.auto(k.feed, 16)
    ast = epilogue_a(k)
    unpack_bias_b(k, st["b"])
    a.auto()
    k.stamp()
    first_reads(k, 0)
    for g in range(16, 20):
        k.push_w(g)
    for g in range(16, 20):
        k.push_a(g)
    for g in range(20, 28):
        k.push_w(g)

    def issue_b3():
        a("v_and_b32 v19, 0x1ff, %s" % v(VP))
        a("s_mov_b32 %s, %d" % (s(SPO), FB3))
        st["p"] = k.poll_issue(19)
        st["x"] = load_residual(k)
    for g in range(16):
        nfeed = 8 if any(it[1] < 16 for it in k.queue) else 4
        if g == 1:
            a("s_lshl_b32 s82, %s, 5" % s(SJ))
            a("s_add_u32 s82, s82, %s" % s(SI))
            g_iter(k, g, nfeed, True, top=lambda: a.wait(vm=ast), after=lambda: k.signal(FB2, 82))
        elif g == 12:
            g_iter(k, g, nfeed, True, after=issue_b3)
        elif g == 14:
            g_iter(k, g, nfeed, True, top=lambda: k.poll_check(st["p"], 19), after=lambda: k.flags.add("C"))
        else:
            g_iter(k, g, nfeed, True)
        if g in (3, 9):
            k.stamp()
    k.stamp()
    a.auto(k.feed, 10)
    ust = epilogue_b(k)
    a.auto()
    k.stamp()
    tail_cd(k, st["x"], ust)


def helper_path(k):
    a = k.a
    k.tag = "h"
    a.label("L_helper")
    for g in range(16, 28):
        k.push_w(g)
    for n in range(9, 16):
        a_step(k, n)
    k.stamp()
    a.auto(k.feed, 16)
    ast = epilogue_a(k)
    a.auto()
    k.feed(64)
    k.stamp()
    a("s_lshl_b32 s4, %s, 2" % s(XCD))
    a("s_add_u32 s4, s4, %s" % s(SL))
    a("s_sub_u32 %s, s4, 28" % s(BD))
    a("s_lshl_b32 s82, %s, 5" % s(SJ))
    a("s_add_u32 s82, s82, %s" % s(SI))
    a.wait(vm=ast)
    a("s_barrier")
    k.signal(FB2, 82)
    a("v_and_b32 v19, 0x1ff, %s" % v(VP))
    a("s_lshl_b32 s4, %s, 9" % s(XCD))
    a("s_add_u32 %s, s4, %d" % (s(SPO), FB2))
    pid = k.poll_issue(19)
    k.poll_check(pid, 19)
    a("s_barrier")
    k.stamp()
    ost = helper_job(k)
    k.stamp()
    a.wait(vm=ost)
    a("s_barrier")
    k.signal(FB3, BD)
    xl = load_residual(k)
    a("s_mov_b32 %s, %d" % (s(SPO), FB3))
    pid = k.poll_issue(19)
    k.poll_check(pid, 19)
    k.flags.add("C")
    k.mfma_done = 15
    k.reads_done = 15
    rest, k.queue = k.queue, []
    for g in range(16, 20):
        k.push_a(g)
    k.queue += rest
    first_reads(k, 16, after=lambda: k.feed(16))
    k.stamp()
    tail_cd(k, xl, None)


def build():
    import copy
    a = Asm()
    label = NAME + "_kernel"
    a(".globl %s\n.p2align 8\n.type %s,@function" % (label, label))
    a.label(label)
    k = K(a)
    k.tag = "c"
    ln = prologue(k)
    setup_a_reads(a)
    a.auto(k.feed, 7)
    setup_bcd(a)
    hst = layernorm(k, ln)
    a.auto()
    k.stamp()
    for n in range(9):
        if n == 3:
            a_step(k, n, top=lambda: a.wait(vm=hst), after=lambda: k.signal(FB1, 2))
        else:
            a_step(k, n)
    k.stamp()
    assert not k.queue, k.queue
    a("s_cmp_ge_u32 %s, 28" % s(SL))
    a("s_cbranch_scc1 L_helper")
    st = a.state()
    saved = {key: copy.deepcopy(val) for key, val in k.__dict__.items() if key != "a"}
    main_path(k)
    a.restore(st)
    k.__dict__.update(saved)
    helper_path(k)
    a.label("L_end")
    a("s_endpgm")
    head = ("; generated by gen/gen2.py\n; @launch grid=(256,1,1) block=(256,1,1) lds=%d\n"
            '.amdgcn_target "amdgcn-amd-amdhsa--gfx950"\n.text\n' % LDS_BYTES)
    desc = ('.section .rodata,"a"\n.p2align 6\n.amdhsa_kernel %s\n  .amdhsa_next_free_vgpr 512\n  .amdhsa_next_free_sgpr 102\n'
            "  .amdhsa_accum_offset 256\n  .amdhsa_group_segment_fixed_size 0\n  .amdhsa_kernarg_size 88\n"
            "  .amdhsa_user_sgpr_count 2\n  .amdhsa_user_sgpr_kernarg_segment_ptr 1\n"
            "  .amdhsa_system_sgpr_workgroup_id_x 1\n.end_amdhsa_kernel\n" % label)
    return head + a.text() + desc


if __name__ == "__main__":
    for arg in sys.argv[2:]:
        key, _, val = arg.partition("=")
        OPT[key] = int(val) if val else True
    open(sys.argv[1], "w").write(build())
```

```python
import sys
sys.path.insert(0, 'gen')
from asmlib import Asm
def make(src_path, out_path, kid, idx, op, mult, nwg=256):
    src = open(src_path).read()
    lines = src.split('\n')
    launch = [l for l in lines if l.startswith('; @launch')]
    name = "recurrent_scan__linear_attn_block__mixer_token_mlp__prompt_kernel"
    launch = [l if 'kernel=' in l else l.replace('@launch', '@launch kernel=' + name) for l in launch]
    body = '\n'.join(l for l in lines if not l.startswith('; @launch'))
    a = Asm()
    a(".globl probe_kernel\n.p2align 8\n.type probe_kernel,@function")
    a.label("probe_kernel")
    a("s_cmp_ge_u32 s2, 1\ns_cbranch_scc1 L_pend")
    a("s_load_dwordx2 s[8:9], s[0:1], 80\ns_waitcnt lgkmcnt(0)\ns_mov_b32 s10, 0xa00000\ns_mov_b32 s11, 0x20000")
    a("v_lshlrev_b32 v1, 10, v0")
    for q in range(4):
        a("s_mov_b32 s4, %d" % (0x980000 + q * 65536))
        a("buffer_load_dword v%d, v1, s[8:11], s4 offen sc1" % (2 + q))
        a("s_mov_b32 s4, %d" % (0x980000 + kid * 65536 + min(q, (nwg - 1) // 64 if nwg % 64 == 0 else 2) * 65536 + idx * 4))
        a("buffer_load_dword v%d, v1, s[8:11], s4 offen sc1" % (6 + q))
    a("s_waitcnt vmcnt(0)")
    a("v_min_u32 v2, v2, v3\nv_min_u32 v4, v4, v5\nv_min_u32 v2, v2, v4")
    a("v_readlane_b32 s5, v2, 0")
    for l in range(1, 64):
        a("v_readlane_b32 s6, v2, %d\ns_nop 1\ns_min_u32 s5, s5, s6" % l)
    for q in range(4):
        a("v_subrev_u32 v%d, s5, v%d" % (6 + q, 6 + q))
    vop, sop = {"max": ("v_max_u32", "s_max_u32"), "mean": ("v_add_u32", "s_add_u32"), "min": ("v_min_u32", "s_min_u32")}[op]
    a("%s v6, v6, v7\n%s v8, v8, v9\n%s v6, v6, v8" % (vop, vop, vop))
    a("v_readlane_b32 s7, v6, 0")
    for l in range(1, 64):
        a("v_readlane_b32 s6, v6, %d\ns_nop 1\n%s s7, s7, s6" % (l, sop))
    a("s_mul_i32 s7, s7, %d" % mult)
    if op == "mean":
        a("s_lshr_b32 s7, s7, 8")
    a("s_min_u32 s7, s7, 200000")
    a("s_memrealtime s[12:13]\ns_waitcnt lgkmcnt(0)")
    a.label("L_spin")
    a("s_memrealtime s[14:15]\ns_waitcnt lgkmcnt(0)\ns_sub_u32 s6, s14, s12\ns_cmp_lt_u32 s6, s7\ns_cbranch_scc1 L_spin")
    a.label("L_pend")
    a("s_endpgm")
    desc = '''.p2align 6
.amdhsa_kernel probe_kernel
  .amdhsa_next_free_vgpr 16
  .amdhsa_next_free_sgpr 32
  .amdhsa_accum_offset 16
  .amdhsa_group_segment_fixed_size 0
  .amdhsa_kernarg_size 88
  .amdhsa_user_sgpr_count 2
  .amdhsa_user_sgpr_kernarg_segment_ptr 1
  .amdhsa_system_sgpr_workgroup_id_x 1
.end_amdhsa_kernel
'''
    b2 = body.replace('.section .rodata,"a"', a.text() + '.section .rodata,"a"') + desc
    E = '; @launch kernel=probe_kernel grid=(1,1,1) block=(64,1,1) lds=0'
    open(out_path, 'w').write('\n'.join(launch + [E]) + '\n' + b2)
if __name__ == "__main__":
    src = sys.argv[1]
    for spec in sys.argv[2:]:
        kid, idx, op, mult = spec.split(',')[:4]
        nwg = int(spec.split(',')[4]) if spec.count(',') > 3 else 256
        make(src, "q_%s_%s_%s_%s.s" % (kid, idx, op, mult), int(kid), int(idx), op, int(mult), nwg)
```

```python
import sys
sys.path.insert(0, 'gen')
NAME = "recurrent_scan__linear_attn_block__mixer_token_mlp__prompt_kernel"
CODE = """.globl pre_kernel
.p2align 8
.type pre_kernel,@function
pre_kernel:
    s_cmp_ge_u32 s2, 1
    s_cbranch_scc1 L_pre_end
    s_load_dwordx2 s[8:9], s[0:1], 80
    s_mov_b32 s10, 0x4000000
    s_mov_b32 s11, 0x20000
    s_mov_b32 s4, 0x2000000
    s_waitcnt lgkmcnt(0)
    s_memrealtime s[20:21]
    s_waitcnt lgkmcnt(0)
    v_mov_b32 v2, s20
    buffer_store_dword v2, off, s[8:11], s4 sc1
    s_waitcnt vmcnt(0)
L_pre_end:
    s_endpgm
.globl post_kernel
.p2align 8
.type post_kernel,@function
post_kernel:
    s_cmp_ge_u32 s2, 1
    s_cbranch_scc1 L_post_end
    s_memrealtime s[20:21]
    s_load_dwordx2 s[8:9], s[0:1], 80
    s_mov_b32 s10, 0x4000000
    s_mov_b32 s11, 0x20000
    s_mov_b32 s4, 0x2000000
    s_waitcnt lgkmcnt(0)
    buffer_load_dword v2, off, s[8:11], s4 sc1
    s_waitcnt vmcnt(0)
    v_readfirstlane_b32 s5, v2
    s_nop 3
    s_sub_u32 s7, s20, s5
    s_mul_i32 s7, s7, 20
    s_min_u32 s7, s7, 200000
L_post_spin:
    s_memrealtime s[14:15]
    s_waitcnt lgkmcnt(0)
    s_sub_u32 s6, s14, s20
    s_cmp_lt_u32 s6, s7
    s_cbranch_scc1 L_post_spin
L_post_end:
    s_endpgm
"""
DESC = """.p2align 6
.amdhsa_kernel %s
  .amdhsa_next_free_vgpr 16
  .amdhsa_next_free_sgpr 32
  .amdhsa_accum_offset 16
  .amdhsa_group_segment_fixed_size 0
  .amdhsa_kernarg_size 88
  .amdhsa_user_sgpr_count 2
  .amdhsa_user_sgpr_kernarg_segment_ptr 1
  .amdhsa_system_sgpr_workgroup_id_x 1
.end_amdhsa_kernel
"""
for i, path in enumerate(sys.argv[1:]):
    lines = open(path).read().split("\n")
    body = "\n".join(l for l in lines if not l.startswith("; @launch"))
    head = ("; @launch kernel=pre_kernel grid=(1,1,1) block=(64,1,1) lds=0\n"
            "; @launch kernel=%s grid=(256,1,1) block=(256,1,1) lds=163840\n"
            "; @launch kernel=post_kernel grid=(1,1,1) block=(64,1,1) lds=0\n" % NAME)
    body = body.replace('.section .rodata,"a"', CODE + '.section .rodata,"a"') + DESC % "pre_kernel" + DESC % "post_kernel"
    open("b%d.s" % i, "w").write(head + body)
```
